```python
import torch

def _softmax(x, axis=-1):
    return torch.softmax(x, dim=axis)
def _gelu(x):
    return torch.nn.functional.gelu(x, approximate="tanh")
def _silu(x):
    return torch.nn.functional.silu(x)
def _sigmoid(x):
    return torch.sigmoid(x)
def _layernorm(x, axis=-1, eps=1e-5):
    m = x.mean(dim=axis, keepdim=True)
    v = x.var(dim=axis, keepdim=True, unbiased=False)
    return (x - m) / torch.sqrt(v + eps)
def _scatter_add(tgt, idx, src, axis=0):
    return tgt.clone().index_add_(axis, idx, src)
def _segment_sum(src, seg, n):
    out = torch.zeros((n,) + src.shape[1:], dtype=src.dtype)
    return out.index_add_(0, seg, src)
def _pad(x, pw):
    flat = tuple(v for pair in reversed(pw) for v in pair)
    return torch.nn.functional.pad(x, flat)

kernel_name = 'standalone__low_rank_proj_linformer__decode'

def setup_inputs():

    _w = (lambda a: (lambda t: t.to(torch.bfloat16) if t.is_floating_point() else t)(torch.as_tensor(a)))
    B, H, Sq, Skv, Dh, R = 1, 32, 1, 65536, 128, 16
    return {
        "q": _w((lambda *s: torch.randn(*s, dtype=torch.bfloat16) * 0.8)(B, H, Sq, Dh)),
        "k": _w((lambda *s: torch.randn(*s, dtype=torch.bfloat16) * 0.8)(B, H, Skv, Dh)),
        "v": _w((lambda *s: torch.randn(*s, dtype=torch.bfloat16) * 0.05)(B, H, Skv, Dh)),
        "e_proj": _w((lambda *s: torch.randn(*s, dtype=torch.bfloat16) * 0.8)(R, Skv) * (Skv ** -0.5)),
        "f_proj": _w((lambda *s: torch.randn(*s, dtype=torch.bfloat16) * 0.05)(R, Skv) * (Skv ** -0.5)),
    }

def reference(q, k, v, e_proj, f_proj):
    B, H, Sq, Dh = q.shape
    kp = torch.einsum("rn,bhnd->bhrd", e_proj, k)
    vp = torch.einsum("rn,bhnd->bhrd", f_proj, v)
    scores = torch.einsum("bhqd,bhrd->bhqr", q, kp) * (Dh ** -0.5)
    p = _softmax(scores, axis=-1)
    o = torch.einsum("bhqr,bhrd->bhqd", p, vp)
    return o
```

```python
import sys, argparse

NAME = "standalone__low_rank_proj_linformer__decode"
HEAD_BYTES = 65536 * 256
ROW_E = 65536 * 2

HDR = """; Kernarg layout for this problem (64 bytes, ptrs only, base s[0:1]):
"""


class A:
    def __init__(self):
        self.l = []
    def __call__(self, s):
        self.l.append("    " + s)
    def raw(self, s):
        self.l.append(s)
    def label(self, s):
        self.l.append(s + ":")
    def text(self):
        return "\n".join(self.l) + "\n"


def desc(name, vgpr, sgpr, accum=None):
    if accum is None:
        accum = (vgpr + 3) // 4 * 4
    return f""".section .rodata,"a"
.p2align 6
.amdhsa_kernel {name}
  .amdhsa_next_free_vgpr {vgpr}
  .amdhsa_next_free_sgpr {sgpr}
  .amdhsa_accum_offset {accum}
  .amdhsa_group_segment_fixed_size 0
  .amdhsa_kernarg_size 64
  .amdhsa_user_sgpr_count 2
  .amdhsa_user_sgpr_kernarg_segment_ptr 1
  .amdhsa_system_sgpr_workgroup_id_x 1
.end_amdhsa_kernel
"""


def gen_main(a, P):
    WPB, T, NX, NB = P["WPB"], P["T"], P["NX"], P["NB"]
    ILV = P["ILV"]
    ntk = " nt" if P["NT"] else ""
    if P.get("KFLAGS"): ntk = " " + P["KFLAGS"]
    WT = WPB // T
    NR = 65536 // NX
    tiles_wg = NR // 32
    tiles_w = tiles_wg // WT
    assert tiles_w % NB == 0 or True
    NWG = 64 * NX // T
    kname = "main_kernel"
    vOffK, vOffE = 1, 2
    base = 4
    buf = [base + 36 * b for b in range(NB)]
    tmp = base + 36 * NB
    acc = tmp + 8
    nv = acc + 32
    loglx = NX.bit_length() - 1
    a.raw(f".globl {kname}\n.p2align 8\n.type {kname},@function\n{kname}:")
    a(f"s_cmp_ge_u32 s2, {NWG}")
    a("s_cbranch_scc1 L_main_done")
    a("s_load_dwordx4 s[4:7], s[0:1], 8")
    a("s_load_dwordx4 s[24:27], s[0:1], 24")
    a("s_load_dwordx2 s[28:29], s[0:1], 56")
    a("v_lshrrev_b32 v3, 6, v0")
    a("v_and_b32 v0, 63, v0")
    a("v_readfirstlane_b32 s3, v3")
    a("v_lshrrev_b32 v3, 4, v0")
    a("v_and_b32 v2, 15, v0")
    a("v_lshlrev_b32 v1, 11, v3")
    a("v_lshl_add_u32 v1, v2, 4, v1")
    a("v_lshlrev_b32 v2, 17, v2")
    a("v_lshl_add_u32 v2, v3, 4, v2")
    a(f"s_and_b32 s30, s2, {NX-1}")
    a(f"s_lshr_b32 s31, s2, {loglx}")
    if T == 2:
        a(f"s_lshr_b32 s33, s3, {WT.bit_length()-1}")
        a(f"s_and_b32 s34, s3, {WT-1}")
        a("s_mov_b32 s32, s31")
    else:
        a("s_and_b32 s33, s31, 1")
        a("s_lshr_b32 s32, s31, 1")
        a("s_mov_b32 s34, s3")
    a("s_waitcnt lgkmcnt(0)")
    a("s_cmp_eq_u32 s33, 0")
    a("s_cselect_b32 s8, s4, s6")
    a("s_cselect_b32 s9, s5, s7")
    a("s_cselect_b32 s12, s24, s26")
    a("s_cselect_b32 s13, s25, s27")
    a("s_lshl_b32 s35, s32, 24")
    a(f"s_mul_i32 s36, s30, {NR*256}")
    a("s_add_u32 s35, s35, s36")
    a("s_add_u32 s8, s8, s35")
    a("s_addc_u32 s9, s9, 0")
    a("s_and_b32 s9, s9, 0xffff")
    a(f"s_mov_b32 s10, {NR*256}")
    a("s_mov_b32 s11, 0x20000")
    a(f"s_mul_i32 s36, s30, {NR*2}")
    a("s_add_u32 s12, s12, s36")
    a("s_addc_u32 s13, s13, 0")
    a("s_and_b32 s13, s13, 0xffff")
    a(f"s_mov_b32 s14, {15*ROW_E + NR*2}")
    a("s_mov_b32 s15, 0x20000")
    if ILV:
        a("s_lshl_b32 s16, s34, 13")
        a("s_lshl_b32 s17, s34, 6")
        stepK, stepE = WT * 8192, WT * 64
    else:
        a(f"s_mul_i32 s16, s34, {tiles_w*8192}")
        a(f"s_mul_i32 s17, s34, {tiles_w*64}")
        stepK, stepE = 8192, 64
    a("s_mov_b32 s20, 0x05040100")
    a("s_mov_b32 s21, 0x07060302")

    def issue(b):
        r = buf[b]
        for j in range(8):
            a(f"buffer_load_dwordx4 v[{r+4*j}:{r+4*j+3}], v{vOffK}, s[8:11], s16 offen offset:{j*256}{ntk}")
        a(f"buffer_load_dwordx4 v[{r+32}:{r+35}], v{vOffE}, s[12:15], s17 offen")
        a(f"s_add_u32 s16, s16, {stepK}")
        a(f"s_add_u32 s17, s17, {stepE}")

    for b in range(NB - 1):
        issue(b)
    for i in range(32):
        a(f"v_mov_b32 v{acc+i}, 0")
    a(f"s_mov_b32 s18, {tiles_w // NB}")
    assert tiles_w % NB == 0, (tiles_w, NB)
    a.label("L_loop")
    for b in range(NB):
        issue((b + NB - 1) % NB)
        a(f"s_waitcnt vmcnt({9*(NB-1)})")
        r = buf[b]
        def perm(dd):
            i, h = dd >> 1, dd & 1
            t = tmp + 4 * (dd & 1)
            for p in range(4):
                a(f"v_perm_b32 v{t+p}, v{r+4*(2*p+1)+i}, v{r+4*(2*p)+i}, s{20+h}")
        def mfma(dd):
            t = tmp + 4 * (dd & 1)
            a(f"v_mfma_f32_16x16x32_bf16 v[{acc+4*dd}:{acc+4*dd+3}], v[{r+32}:{r+35}], v[{t}:{t+3}], v[{acc+4*dd}:{acc+4*dd+3}]")
        if P.get("NOCOMP"):
            continue
        perm(0); perm(1)
        for dd in range(7):
            mfma(dd)
            if dd + 2 < 8:
                perm(dd + 2)
        if b == NB - 1:
            a("s_sub_u32 s18, s18, 1")
        else:
            a("s_nop 0")
        a("s_nop 0")
        mfma(7)
    if P.get("NOCOMP"):
        a("s_sub_u32 s18, s18, 1")
    a("s_cmp_lg_u32 s18, 0")
    a("s_cbranch_scc1 L_loop")
    a("s_waitcnt vmcnt(0)")
    a("s_nop 7")
    a("s_nop 7")
    a("s_lshl_b32 s36, s3, 13")
    a("v_lshlrev_b32 v1, 4, v0")
    a("v_add_u32 v2, s36, v1")
    for dd in range(8):
        a(f"ds_write_b128 v2, v[{acc+4*dd}:{acc+4*dd+3}] offset:{dd*1024}")
    a("s_waitcnt lgkmcnt(0)")
    a("s_barrier")
    nslot = max(1, 8 // WT)
    if T == 2:
        a(f"s_mul_i32 s36, s33, {WT*8192}")
    else:
        a("s_mov_b32 s36, 0")
    a("s_lshl_b32 s37, s34, 10")
    a("s_add_u32 s36, s36, s37")
    a("v_add_u32 v2, s36, v1")
    a("s_lshl_b32 s38, s33, 5")
    a("s_add_u32 s38, s38, s32")
    a(f"s_lshl_b32 s38, s38, {loglx}")
    a("s_add_u32 s38, s38, s30")
    a("s_lshl_b32 s38, s38, 13")
    a("s_add_u32 s8, s28, s38")
    a("s_addc_u32 s9, s29, 0")
    a("s_and_b32 s9, s9, 0xffff")
    a("s_mov_b32 s10, 8192")
    a("s_mov_b32 s11, 0x20000")
    a("v_add_u32 v3, s37, v1")
    if WT > 8:
        a("s_cmp_ge_u32 s34, 8")
        a("s_cbranch_scc1 L_main_done")
    for k in range(nslot):
        kb = k * WT * 1024
        for w in range(WT):
            addr = w * 8192 + kb
            hi = addr // 65536
            if hi:
                a(f"v_add_u32 v{tmp}, {hi*65536}, v2")
                a(f"ds_read_b128 v[{buf[0]+4*(w%8)}:{buf[0]+4*(w%8)+3}], v{tmp} offset:{addr%65536}")
            else:
                a(f"ds_read_b128 v[{buf[0]+4*(w%8)}:{buf[0]+4*(w%8)+3}], v2 offset:{addr}")
            if w % 8 == 7 or w == WT - 1:
                a("s_waitcnt lgkmcnt(0)")
                w0 = w - (w % 8)
                for ww in range(w % 8 + 1):
                    for i in range(4):
                        if w0 + ww == 0:
                            a(f"v_mov_b32 v{acc+i}, v{buf[0]+4*ww+i}")
                        else:
                            a(f"v_add_f32 v{acc+i}, v{acc+i}, v{buf[0]+4*ww+i}")
        a(f"buffer_store_dwordx4 v[{acc}:{acc+3}], v3, s[8:11], 0 offen offset:{kb}")
        a("s_nop 1")
    a.label("L_main_done")
    a("s_endpgm")
    return kname, NWG, WPB * 64, WPB * 8192, nv, 40


def gen_final(a, P):
    NX = P["NX"]
    kname = "final_kernel"
    a.raw(f".globl {kname}\n.p2align 8\n.type {kname},@function\n{kname}:")
    a("s_cmp_ge_u32 s2, 32")
    a("s_cbranch_scc1 L_fin_done")
    a("s_load_dwordx2 s[4:5], s[0:1], 0")
    a("s_load_dwordx2 s[6:7], s[0:1], 40")
    a("s_load_dwordx2 s[28:29], s[0:1], 56")
    a("v_lshrrev_b32 v3, 6, v0")
    a("v_lshlrev_b32 v1, 4, v0")
    a("v_and_b32 v2, 63, v0")
    a("v_and_b32 v4, 15, v0")
    a("v_lshl_add_u32 v5, v4, 3, v3")
    a("v_lshlrev_b32 v5, 1, v5")
    a("s_lshl_b32 s30, s2, 8")
    a("s_waitcnt lgkmcnt(0)")
    a(f"s_mul_i32 s31, s2, {NX*8192}")
    a("s_add_u32 s8, s28, s31")
    a("s_addc_u32 s9, s29, 0")
    a("s_and_b32 s9, s9, 0xffff")
    a(f"s_mov_b32 s10, {NX*8192}")
    a("s_mov_b32 s11, 0x20000")
    a(f"s_add_u32 s31, s31, {32*NX*8192}")
    a("s_add_u32 s12, s28, s31")
    a("s_addc_u32 s13, s29, 0")
    a("s_and_b32 s13, s13, 0xffff")
    a(f"s_mov_b32 s14, {NX*8192}")
    a("s_mov_b32 s15, 0x20000")
    a("s_add_u32 s16, s4, s30")
    a("s_addc_u32 s17, s5, 0")
    a("s_and_b32 s17, s17, 0xffff")
    a("s_mov_b32 s18, 256")
    a("s_mov_b32 s19, 0x20000")
    a("s_add_u32 s20, s6, s30")
    a("s_addc_u32 s21, s7, 0")
    a("s_and_b32 s21, s21, 0xffff")
    a("s_mov_b32 s22, 256")
    a("s_mov_b32 s23, 0x20000")
    a("buffer_load_ushort v6, v5, s[16:19], 0 offen")
    KB, VB = 16, 16 + 4 * NX
    for p in range(NX):
        a(f"s_mov_b32 s24, {p*8192}")
        a(f"buffer_load_dwordx4 v[{KB+4*p}:{KB+4*p+3}], v1, s[8:11], s24 offen")
    for p in range(NX):
        a(f"s_mov_b32 s24, {p*8192}")
        a(f"buffer_load_dwordx4 v[{VB+4*p}:{VB+4*p+3}], v1, s[12:15], s24 offen")
    a(f"s_waitcnt vmcnt({NX})")
    for p in range(1, NX):
        for i in range(4):
            a(f"v_add_f32 v{KB+i}, v{KB+i}, v{KB+4*p+i}")
    a(f"v_cvt_pk_bf16_f32 v8, v{KB}, v{KB+1}")
    a(f"v_cvt_pk_bf16_f32 v9, v{KB+2}, v{KB+3}")
    a("v_lshlrev_b32 v6, 16, v6")
    a(f"v_lshlrev_b32 v{KB}, 16, v8")
    a(f"v_and_b32 v{KB+1}, 0xffff0000, v8")
    a(f"v_lshlrev_b32 v{KB+2}, 16, v9")
    a(f"v_and_b32 v{KB+3}, 0xffff0000, v9")
    for i in range(4):
        a(f"v_mul_f32 v{KB+i}, v{KB+i}, v6")
    for sh in (8, 4, 2, 1):
        a("s_nop 1")
        for i in range(4):
            a(f"v_add_f32_dpp v{KB+i}, v{KB+i}, v{KB+i} row_ror:{sh} row_mask:0xf bank_mask:0xf")
    a("v_lshrrev_b32 v7, 4, v2")
    a("v_lshlrev_b32 v7, 4, v7")
    a("v_lshl_add_u32 v7, v3, 6, v7")
    a("v_cmp_eq_u32 vcc, 0, v4")
    a("s_and_saveexec_b64 s[26:27], vcc")
    a(f"ds_write_b128 v7, v[{KB}:{KB+3}]")
    a("s_mov_b64 exec, s[26:27]")
    a("s_waitcnt lgkmcnt(0)")
    a("s_barrier")
    a("v_lshlrev_b32 v7, 2, v4")
    for dd in range(8):
        a(f"ds_read_b32 v{KB+dd}, v7 offset:{dd*64}")
    a("s_waitcnt lgkmcnt(0)")
    for dd in range(1, 8):
        a(f"v_add_f32 v{KB}, v{KB}, v{KB+dd}")
    a(f"v_cvt_pk_bf16_f32 v8, v{KB}, v{KB}")
    a("v_lshlrev_b32 v8, 16, v8")
    a("v_mul_f32 v8, 0x3db504f3, v8")
    a("v_cvt_pk_bf16_f32 v8, v8, v8")
    a("v_lshlrev_b32 v8, 16, v8")
    a("v_mov_b32 v9, v8")
    for sh in (8, 4, 2, 1):
        a("s_nop 1")
        a(f"v_max_f32_dpp v9, v9, v9 row_ror:{sh} row_mask:0xf bank_mask:0xf")
    a("v_sub_f32 v8, v8, v9")
    a("v_mul_f32 v8, 0x3fb8aa3b, v8")
    a("v_exp_f32 v8, v8")
    a("s_nop 0")
    a("v_mov_b32 v9, v8")
    for sh in (8, 4, 2, 1):
        a("s_nop 1")
        a(f"v_add_f32_dpp v9, v9, v9 row_ror:{sh} row_mask:0xf bank_mask:0xf")
    a("v_rcp_f32 v9, v9")
    a("s_nop 0")
    a("v_mul_f32 v8, v8, v9")
    a("v_cvt_pk_bf16_f32 v8, v8, v8")
    a("v_lshlrev_b32 v8, 16, v8")
    a("v_lshrrev_b32 v7, 4, v2")
    a("v_lshlrev_b32 v7, 4, v7")
    for i in range(4):
        a(f"v_add_u32 v{10+i}, {4*i}, v7")
    for i in range(4):
        a(f"ds_bpermute_b32 v{10+i}, v{10+i}, v8")
    a("s_waitcnt vmcnt(0)")
    for p in range(1, NX):
        for i in range(4):
            a(f"v_add_f32 v{VB+i}, v{VB+i}, v{VB+4*p+i}")
    a(f"v_cvt_pk_bf16_f32 v8, v{VB}, v{VB+1}")
    a(f"v_cvt_pk_bf16_f32 v9, v{VB+2}, v{VB+3}")
    a(f"v_lshlrev_b32 v{VB}, 16, v8")
    a(f"v_and_b32 v{VB+1}, 0xffff0000, v8")
    a(f"v_lshlrev_b32 v{VB+2}, 16, v9")
    a(f"v_and_b32 v{VB+3}, 0xffff0000, v9")
    a("s_waitcnt lgkmcnt(0)")
    a(f"v_mul_f32 v14, v10, v{VB}")
    a(f"v_fmac_f32 v14, v11, v{VB+1}")
    a(f"v_fmac_f32 v14, v12, v{VB+2}")
    a(f"v_fmac_f32 v14, v13, v{VB+3}")
    a("v_xor_b32 v7, 16, v2")
    a("v_lshlrev_b32 v7, 2, v7")
    a("ds_bpermute_b32 v15, v7, v14")
    a("s_waitcnt lgkmcnt(0)")
    a("v_add_f32 v14, v14, v15")
    a("v_xor_b32 v7, 32, v2")
    a("v_lshlrev_b32 v7, 2, v7")
    a("ds_bpermute_b32 v15, v7, v14")
    a("s_waitcnt lgkmcnt(0)")
    a("v_add_f32 v14, v14, v15")
    a("v_cvt_pk_bf16_f32 v14, v14, v14")
    a("v_cmp_gt_u32 vcc, 16, v2")
    a("s_and_saveexec_b64 s[26:27], vcc")
    a("buffer_store_short v14, v5, s[20:23], 0 offen")
    a.label("L_fin_done")
    a("s_endpgm")
    return kname, 32, 512, 512, 16 + 8 * NX, 40


def generate(P):
    a = A()
    m = gen_main(a, P)
    f = gen_final(a, P)
    hdr = HDR
    for k in (m, f):
        hdr += f"; @launch kernel={k[0]} grid=({k[1]},1,1) block=({k[2]},1,1) lds={k[3]}\n"
    s = hdr + '.amdgcn_target "amdgcn-amd-amdhsa--gfx950"\n.text\n' + a.text()
    for k in (m, f):
        s += desc(k[0], k[4], k[5])
    return s


DEF = dict(WPB=16, T=2, NX=8, NB=2, NT=0, ILV=1)

if __name__ == "__main__":
    P = dict(DEF)
    out = sys.argv[1]
    for kv in sys.argv[2:]:
        k, v = kv.split("=")
        try:
            v = int(v)
        except ValueError:
            v = v.replace("+", " ")
        P[k] = v
    open(out, "w").write(generate(P))
    print("wrote", out, P)
```

```python
import sys, argparse

NAME = "standalone__low_rank_proj_linformer__decode"
HEAD_BYTES = 65536 * 256
ROW_E = 65536 * 2

HDR = """; Kernarg layout for this problem (64 bytes, ptrs only, base s[0:1]):
"""


class A:
    def __init__(self):
        self.l = []
    def __call__(self, s):
        import re
        m = re.search(r"offset:(\d+)", s)
        if m:
            o = int(m.group(1))
            if s.startswith("buffer_"): assert o < 4096, s
            elif s.startswith("ds_"): assert o < 65536, s
            elif s.startswith("global_"): assert o < 4096, s
        self.l.append("    " + s)
    def raw(self, s):
        self.l.append(s)
    def label(self, s):
        self.l.append(s + ":")
    def text(self):
        return "\n".join(self.l) + "\n"


def desc(name, vgpr, sgpr, accum=None):
    if accum is None:
        accum = (vgpr + 3) // 4 * 4
    return f""".section .rodata,"a"
.p2align 6
.amdhsa_kernel {name}
  .amdhsa_next_free_vgpr {vgpr}
  .amdhsa_next_free_sgpr {sgpr}
  .amdhsa_accum_offset {accum}
  .amdhsa_group_segment_fixed_size 0
  .amdhsa_kernarg_size 64
  .amdhsa_user_sgpr_count 2
  .amdhsa_user_sgpr_kernarg_segment_ptr 1
  .amdhsa_system_sgpr_workgroup_id_x 1
.end_amdhsa_kernel
"""


def gen_main(a, P):
    WPB, T, NX, NB = P["WPB"], P["T"], P["NX"], P["NB"]
    ILV = P["ILV"]
    ntk = " nt" if P["NT"] else ""
    if P.get("KFLAGS"): ntk = " " + P["KFLAGS"]
    WT = WPB // T
    NR = 65536 // NX
    tiles_wg = NR // 32
    tiles_w = tiles_wg // WT
    assert tiles_w % NB == 0 or True
    NWG = 64 * NX // T
    kname = "main_kernel"
    vOffK, vOffE = 1, 2
    base = 4
    buf = [base + 36 * b for b in range(NB)]
    tmp = base + 36 * NB
    acc = tmp + 8
    nv = acc + 32
    loglx = NX.bit_length() - 1
    a.raw(f".globl {kname}\n.p2align 8\n.type {kname},@function\n{kname}:")
    a(f"s_cmp_ge_u32 s2, {NWG}")
    a("s_cbranch_scc1 L_main_done")
    if P.get("STAMP"):
        a("s_memrealtime s[40:41]")
    a("s_load_dwordx4 s[4:7], s[0:1], 8")
    a("s_load_dwordx4 s[24:27], s[0:1], 24")
    a("s_load_dwordx2 s[28:29], s[0:1], 56")
    a("v_lshrrev_b32 v3, 6, v0")
    a("v_and_b32 v0, 63, v0")
    a("v_readfirstlane_b32 s3, v3")
    a("v_lshrrev_b32 v3, 4, v0")
    a("v_and_b32 v2, 15, v0")
    a("v_lshlrev_b32 v1, 11, v3")
    a("v_lshl_add_u32 v1, v2, 4, v1")
    a("v_lshlrev_b32 v2, 17, v2")
    a("v_lshl_add_u32 v2, v3, 4, v2")
    if P.get("XMAP"):
        nper = NWG // NX
        a(f"s_lshr_b32 s30, s2, {nper.bit_length()-1}")
        a(f"s_and_b32 s31, s2, {nper-1}")
    else:
        a(f"s_and_b32 s30, s2, {NX-1}")
        a(f"s_lshr_b32 s31, s2, {loglx}")
    if T == 2:
        a(f"s_lshr_b32 s33, s3, {WT.bit_length()-1}")
        a(f"s_and_b32 s34, s3, {WT-1}")
        a("s_mov_b32 s32, s31")
    else:
        a("s_and_b32 s33, s31, 1")
        a("s_lshr_b32 s32, s31, 1")
        a("s_mov_b32 s34, s3")
    a("s_waitcnt lgkmcnt(0)")
    a("s_cmp_eq_u32 s33, 0")
    a("s_cselect_b32 s8, s4, s6")
    a("s_cselect_b32 s9, s5, s7")
    a("s_cselect_b32 s12, s24, s26")
    a("s_cselect_b32 s13, s25, s27")
    a("s_lshl_b32 s35, s32, 24")
    a(f"s_mul_i32 s36, s30, {NR*256}")
    a("s_add_u32 s35, s35, s36")
    a("s_add_u32 s8, s8, s35")
    a("s_addc_u32 s9, s9, 0")
    a("s_and_b32 s9, s9, 0xffff")
    a(f"s_mov_b32 s10, {NR*256}")
    a("s_mov_b32 s11, 0x20000")
    a(f"s_mul_i32 s36, s30, {NR*2}")
    a("s_add_u32 s12, s12, s36")
    a("s_addc_u32 s13, s13, 0")
    a("s_and_b32 s13, s13, 0xffff")
    a(f"s_mov_b32 s14, {15*ROW_E + NR*2}")
    a("s_mov_b32 s15, 0x20000")
    if ILV:
        a("s_lshl_b32 s16, s34, 13")
        a("s_lshl_b32 s17, s34, 6")
        stepK, stepE = WT * 8192, WT * 64
    else:
        a(f"s_mul_i32 s16, s34, {tiles_w*8192}")
        a(f"s_mul_i32 s17, s34, {tiles_w*64}")
        stepK, stepE = 8192, 64
    a("s_mov_b32 s20, 0x05040100")
    a("s_mov_b32 s21, 0x07060302")

    def issue(b):
        r = buf[b]
        for j in range(8):
            a(f"buffer_load_dwordx4 v[{r+4*j}:{r+4*j+3}], v{vOffK}, s[8:11], s16 offen offset:{j*256}{ntk}")
        a(f"buffer_load_dwordx4 v[{r+32}:{r+35}], v{vOffE}, s[12:15], s17 offen")
        a(f"s_add_u32 s16, s16, {stepK}")
        a(f"s_add_u32 s17, s17, {stepE}")

    DYN = P.get("DYN", 0)
    CNT = WPB * 8192
    sidx = [50 + b for b in range(NB)]
    if DYN:
        a("s_cmp_lg_u32 s3, 0")
        a("s_cbranch_scc1 L_noinit")
        a(f"v_mov_b32 v3, {CNT}")
        a(f"v_lshl_add_u32 v3, v0, 2, v3")
        a(f"v_mov_b32 v{tmp}, {(NB-1)*WT}")
        a("v_cmp_gt_u32 vcc, 2, v0")
        a("s_and_saveexec_b64 s[48:49], vcc")
        a(f"ds_write_b32 v3, v{tmp}")
        a("s_mov_b64 exec, s[48:49]")
        a("s_waitcnt lgkmcnt(0)")
        a.label("L_noinit")

    def issue_dyn(b):
        r = buf[b]
        a(f"s_lshl_b32 s16, s{sidx[b]}, 13")
        a(f"s_lshl_b32 s17, s{sidx[b]}, 6")
        a(f"s_cmp_lt_u32 s{sidx[b]}, {tiles_wg}")
        a("s_cselect_b32 s17, s17, 0x40000000")
        a("s_cselect_b32 s16, s16, 0x40000000")
        for j in range(8):
            a(f"buffer_load_dwordx4 v[{r+4*j}:{r+4*j+3}], v{vOffK}, s[8:11], s16 offen offset:{j*256}{ntk}")
        a(f"buffer_load_dwordx4 v[{r+32}:{r+35}], v{vOffE}, s[12:15], s17 offen")

    def grab():
        a("s_mov_b64 exec, 1")
        a(f"ds_add_rtn_u32 v{vIdx}, v{vCnt}, v{vOne}")
        a("s_mov_b64 exec, -1")

    if DYN:
        vIdx, vCnt, vOne = nv, nv + 1, nv + 2
        nv += 3
        for b in range(NB - 1):
            a(f"s_add_u32 s{sidx[b]}, s34, {b*WT}")
            issue_dyn(b)
        a(f"s_lshl_b32 s36, s33, 2")
        a(f"s_add_u32 s36, s36, {CNT}")
        a(f"v_mov_b32 v{vCnt}, s36")
        a(f"v_mov_b32 v{vOne}, 1")
    else:
        for b in range(NB - 1):
            issue(b)
    for i in range(32):
        a(f"v_mov_b32 v{acc+i}, 0")
    if DYN:
        a("s_barrier")
        grab()
    else:
        a(f"s_mov_b32 s18, {tiles_w // NB}")
        assert tiles_w % NB == 0, (tiles_w, NB)
    a.label("L_loop")
    for b in range(NB):
        if DYN:
            nb = (b + NB - 1) % NB
            a("s_waitcnt lgkmcnt(0)")
            a(f"v_readfirstlane_b32 s{sidx[nb]}, v{vIdx}")
            grab()
            issue_dyn(nb)
        else:
            issue((b + NB - 1) % NB)
        a(f"s_waitcnt vmcnt({9*(NB-1)})")
        r = buf[b]
        def perm(dd):
            i, h = dd >> 1, dd & 1
            t = tmp + 4 * (dd & 1)
            for p in range(4):
                a(f"v_perm_b32 v{t+p}, v{r+4*(2*p+1)+i}, v{r+4*(2*p)+i}, s{20+h}")
        def mfma(dd):
            t = tmp + 4 * (dd & 1)
            a(f"v_mfma_f32_16x16x32_bf16 v[{acc+4*dd}:{acc+4*dd+3}], v[{r+32}:{r+35}], v[{t}:{t+3}], v[{acc+4*dd}:{acc+4*dd+3}]")
        def dyn_exit():
            nxt = (b + 1) % NB
            a(f"s_cmp_ge_u32 s{sidx[nxt]}, {tiles_wg}")
            a("s_cbranch_scc1 L_loopdone")
        if P.get("NOCOMP"):
            if DYN: dyn_exit()
            continue
        perm(0); perm(1)
        for dd in range(7):
            mfma(dd)
            if dd + 2 < 8:
                perm(dd + 2)
        if b == NB - 1 and not DYN:
            a("s_sub_u32 s18, s18, 1")
        else:
            a("s_nop 0")
        a("s_nop 0")
        mfma(7)
        if DYN: dyn_exit()
    if DYN:
        a("s_branch L_loop")
    else:
        if P.get("NOCOMP"):
            a("s_sub_u32 s18, s18, 1")
        a("s_cmp_lg_u32 s18, 0")
        a("s_cbranch_scc1 L_loop")
    a.label("L_loopdone")
    a("s_waitcnt vmcnt(0) lgkmcnt(0)")
    if P.get("STAMP"):
        a("s_memrealtime s[42:43]")
    a("s_nop 7")
    a("s_nop 7")
    a("s_lshl_b32 s36, s3, 13")
    a("v_lshlrev_b32 v1, 4, v0")
    a("v_add_u32 v2, s36, v1")
    for dd in range(8):
        a(f"ds_write_b128 v2, v[{acc+4*dd}:{acc+4*dd+3}] offset:{dd*1024}")
    a("s_waitcnt lgkmcnt(0)")
    a("s_barrier")
    nslot = max(1, 8 // WT)
    if T == 2:
        a(f"s_mul_i32 s36, s33, {WT*8192}")
    else:
        a("s_mov_b32 s36, 0")
    a("s_lshl_b32 s37, s34, 10")
    a("s_add_u32 s36, s36, s37")
    a("v_add_u32 v2, s36, v1")
    a("s_lshl_b32 s38, s33, 5")
    a("s_add_u32 s38, s38, s32")
    a(f"s_lshl_b32 s38, s38, {loglx}")
    a("s_add_u32 s38, s38, s30")
    a("s_lshl_b32 s38, s38, 13")
    a("s_add_u32 s8, s28, s38")
    a("s_addc_u32 s9, s29, 0")
    a("s_and_b32 s9, s9, 0xffff")
    a("s_mov_b32 s10, 8192")
    a("s_mov_b32 s11, 0x20000")
    a("v_add_u32 v3, s37, v1")
    if WT > 8:
        a("s_cmp_ge_u32 s34, 8")
        a("s_cbranch_scc1 L_main_st")
    for k in range(nslot):
        kb = k * WT * 1024
        for w in range(WT):
            addr = w * 8192 + kb
            hi = addr // 65536
            if hi:
                a(f"v_add_u32 v{tmp}, {hi*65536}, v2")
                a(f"ds_read_b128 v[{buf[0]+4*(w%8)}:{buf[0]+4*(w%8)+3}], v{tmp} offset:{addr%65536}")
            else:
                a(f"ds_read_b128 v[{buf[0]+4*(w%8)}:{buf[0]+4*(w%8)+3}], v2 offset:{addr}")
            if w % 8 == 7 or w == WT - 1:
                a("s_waitcnt lgkmcnt(0)")
                w0 = w - (w % 8)
                for ww in range(w % 8 + 1):
                    for i in range(4):
                        if w0 + ww == 0:
                            a(f"v_mov_b32 v{acc+i}, v{buf[0]+4*ww+i}")
                        else:
                            a(f"v_add_f32 v{acc+i}, v{acc+i}, v{buf[0]+4*ww+i}")
        a(f"s_mov_b32 s39, {kb}")
        a(f"buffer_store_dwordx4 v[{acc}:{acc+3}], v3, s[8:11], s39 offen")
        a("s_nop 1")
    a.label("L_main_st")
    if P.get("STAMP"):
        a("s_waitcnt vmcnt(0)")
        a("s_memrealtime s[44:45]")
        a("s_waitcnt lgkmcnt(0)")
        a(f"s_mul_i32 s36, s2, {WPB}")
        a("s_add_u32 s36, s36, s3")
        a("s_lshl_b32 s36, s36, 5")
        a("s_add_u32 s36, s36, 0x10000000")
        a("s_add_u32 s8, s28, s36")
        a("s_addc_u32 s9, s29, 0")
        a("s_and_b32 s9, s9, 0xffff")
        a("s_mov_b32 s10, 32")
        a("s_mov_b32 s11, 0x20000")
        for i in range(6):
            a(f"v_mov_b32 v{4+i}, s{40+i}")
        a("s_getreg_b32 s46, hwreg(HW_REG_XCC_ID)")
        a("s_getreg_b32 s47, hwreg(HW_REG_HW_ID)")
        a("v_mov_b32 v10, s46")
        a("v_mov_b32 v11, s47")
        a("v_mov_b32 v1, 0")
        a("v_cmp_eq_u32 vcc, 0, v0")
        a("s_and_saveexec_b64 s[48:49], vcc")
        a("buffer_store_dwordx4 v[4:7], v1, s[8:11], 0 offen")
        a("buffer_store_dwordx4 v[8:11], v1, s[8:11], 0 offen offset:16")
    a.label("L_main_done")
    a("s_endpgm")
    return kname, NWG, WPB * 64, WPB * 8192 + (16 if P.get('DYN') else 0), nv, 60


def gen_final(a, P):
    NX = P["NX"]
    kname = "final_kernel"
    a.raw(f".globl {kname}\n.p2align 8\n.type {kname},@function\n{kname}:")
    a("s_cmp_ge_u32 s2, 32")
    a("s_cbranch_scc1 L_fin_done")
    a("s_load_dwordx2 s[4:5], s[0:1], 0")
    a("s_load_dwordx2 s[6:7], s[0:1], 40")
    a("s_load_dwordx2 s[28:29], s[0:1], 56")
    a("v_lshrrev_b32 v3, 6, v0")
    a("v_lshlrev_b32 v1, 4, v0")
    a("v_and_b32 v2, 63, v0")
    a("v_and_b32 v4, 15, v0")
    a("v_lshl_add_u32 v5, v4, 3, v3")
    a("v_lshlrev_b32 v5, 1, v5")
    a("s_lshl_b32 s30, s2, 8")
    a("s_waitcnt lgkmcnt(0)")
    a(f"s_mul_i32 s31, s2, {NX*8192}")
    a("s_add_u32 s8, s28, s31")
    a("s_addc_u32 s9, s29, 0")
    a("s_and_b32 s9, s9, 0xffff")
    a(f"s_mov_b32 s10, {NX*8192}")
    a("s_mov_b32 s11, 0x20000")
    a(f"s_add_u32 s31, s31, {32*NX*8192}")
    a("s_add_u32 s12, s28, s31")
    a("s_addc_u32 s13, s29, 0")
    a("s_and_b32 s13, s13, 0xffff")
    a(f"s_mov_b32 s14, {NX*8192}")
    a("s_mov_b32 s15, 0x20000")
    a("s_add_u32 s16, s4, s30")
    a("s_addc_u32 s17, s5, 0")
    a("s_and_b32 s17, s17, 0xffff")
    a("s_mov_b32 s18, 256")
    a("s_mov_b32 s19, 0x20000")
    a("s_add_u32 s20, s6, s30")
    a("s_addc_u32 s21, s7, 0")
    a("s_and_b32 s21, s21, 0xffff")
    a("s_mov_b32 s22, 256")
    a("s_mov_b32 s23, 0x20000")
    a("buffer_load_ushort v6, v5, s[16:19], 0 offen")
    KB, VB = 16, 16 + 4 * NX
    for p in range(NX):
        a(f"s_mov_b32 s24, {p*8192}")
        a(f"buffer_load_dwordx4 v[{KB+4*p}:{KB+4*p+3}], v1, s[8:11], s24 offen")
    for p in range(NX):
        a(f"s_mov_b32 s24, {p*8192}")
        a(f"buffer_load_dwordx4 v[{VB+4*p}:{VB+4*p+3}], v1, s[12:15], s24 offen")
    a(f"s_waitcnt vmcnt({NX})")
    for p in range(1, NX):
        for i in range(4):
            a(f"v_add_f32 v{KB+i}, v{KB+i}, v{KB+4*p+i}")
    a(f"v_cvt_pk_bf16_f32 v8, v{KB}, v{KB+1}")
    a(f"v_cvt_pk_bf16_f32 v9, v{KB+2}, v{KB+3}")
    a("v_lshlrev_b32 v6, 16, v6")
    a(f"v_lshlrev_b32 v{KB}, 16, v8")
    a(f"v_and_b32 v{KB+1}, 0xffff0000, v8")
    a(f"v_lshlrev_b32 v{KB+2}, 16, v9")
    a(f"v_and_b32 v{KB+3}, 0xffff0000, v9")
    for i in range(4):
        a(f"v_mul_f32 v{KB+i}, v{KB+i}, v6")
    for sh in (8, 4, 2, 1):
        a("s_nop 1")
        for i in range(4):
            a(f"v_add_f32_dpp v{KB+i}, v{KB+i}, v{KB+i} row_ror:{sh} row_mask:0xf bank_mask:0xf")
    a("v_lshrrev_b32 v7, 4, v2")
    a("v_lshlrev_b32 v7, 4, v7")
    a("v_lshl_add_u32 v7, v3, 6, v7")
    a("v_cmp_eq_u32 vcc, 0, v4")
    a("s_and_saveexec_b64 s[26:27], vcc")
    a(f"ds_write_b128 v7, v[{KB}:{KB+3}]")
    a("s_mov_b64 exec, s[26:27]")
    a("s_waitcnt lgkmcnt(0)")
    a("s_barrier")
    a("v_lshlrev_b32 v7, 2, v4")
    for dd in range(8):
        a(f"ds_read_b32 v{KB+dd}, v7 offset:{dd*64}")
    a("s_waitcnt lgkmcnt(0)")
    for dd in range(1, 8):
        a(f"v_add_f32 v{KB}, v{KB}, v{KB+dd}")
    a(f"v_cvt_pk_bf16_f32 v8, v{KB}, v{KB}")
    a("v_lshlrev_b32 v8, 16, v8")
    a("v_mul_f32 v8, 0x3db504f3, v8")
    a("v_cvt_pk_bf16_f32 v8, v8, v8")
    a("v_lshlrev_b32 v8, 16, v8")
    a("v_mov_b32 v9, v8")
    for sh in (8, 4, 2, 1):
        a("s_nop 1")
        a(f"v_max_f32_dpp v9, v9, v9 row_ror:{sh} row_mask:0xf bank_mask:0xf")
    a("v_sub_f32 v8, v8, v9")
    a("v_mul_f32 v8, 0x3fb8aa3b, v8")
    a("v_exp_f32 v8, v8")
    a("s_nop 0")
    a("v_mov_b32 v9, v8")
    for sh in (8, 4, 2, 1):
        a("s_nop 1")
        a(f"v_add_f32_dpp v9, v9, v9 row_ror:{sh} row_mask:0xf bank_mask:0xf")
    a("v_rcp_f32 v9, v9")
    a("s_nop 0")
    a("v_mul_f32 v8, v8, v9")
    a("v_cvt_pk_bf16_f32 v8, v8, v8")
    a("v_lshlrev_b32 v8, 16, v8")
    a("v_lshrrev_b32 v7, 4, v2")
    a("v_lshlrev_b32 v7, 4, v7")
    for i in range(4):
        a(f"v_add_u32 v{10+i}, {4*i}, v7")
    for i in range(4):
        a(f"ds_bpermute_b32 v{10+i}, v{10+i}, v8")
    a("s_waitcnt vmcnt(0)")
    for p in range(1, NX):
        for i in range(4):
            a(f"v_add_f32 v{VB+i}, v{VB+i}, v{VB+4*p+i}")
    a(f"v_cvt_pk_bf16_f32 v8, v{VB}, v{VB+1}")
    a(f"v_cvt_pk_bf16_f32 v9, v{VB+2}, v{VB+3}")
    a(f"v_lshlrev_b32 v{VB}, 16, v8")
    a(f"v_and_b32 v{VB+1}, 0xffff0000, v8")
    a(f"v_lshlrev_b32 v{VB+2}, 16, v9")
    a(f"v_and_b32 v{VB+3}, 0xffff0000, v9")
    a("s_waitcnt lgkmcnt(0)")
    a(f"v_mul_f32 v14, v10, v{VB}")
    a(f"v_fmac_f32 v14, v11, v{VB+1}")
    a(f"v_fmac_f32 v14, v12, v{VB+2}")
    a(f"v_fmac_f32 v14, v13, v{VB+3}")
    a("v_xor_b32 v7, 16, v2")
    a("v_lshlrev_b32 v7, 2, v7")
    a("ds_bpermute_b32 v15, v7, v14")
    a("s_waitcnt lgkmcnt(0)")
    a("v_add_f32 v14, v14, v15")
    a("v_xor_b32 v7, 32, v2")
    a("v_lshlrev_b32 v7, 2, v7")
    a("ds_bpermute_b32 v15, v7, v14")
    a("s_waitcnt lgkmcnt(0)")
    a("v_add_f32 v14, v14, v15")
    a("v_cvt_pk_bf16_f32 v14, v14, v14")
    a("v_cmp_gt_u32 vcc, 16, v2")
    a("s_and_saveexec_b64 s[26:27], vcc")
    a("buffer_store_short v14, v5, s[20:23], 0 offen")
    a.label("L_fin_done")
    a("s_endpgm")
    return kname, 32, 512, 512, 16 + 8 * NX, 40


def generate(P):
    a = A()
    m = gen_main(a, P)
    ks = [m]
    if not P.get("ONLYMAIN"):
        ks.append(gen_final(a, P))
    hdr = HDR
    for k in ks:
        hdr += f"; @launch kernel={k[0]} grid=({k[1]},1,1) block=({k[2]},1,1) lds={k[3]}\n"
    s = hdr + '.amdgcn_target "amdgcn-amd-amdhsa--gfx950"\n.text\n' + a.text()
    for k in ks:
        s += desc(k[0], k[4], k[5])
    return s


DEF = dict(WPB=16, T=2, NX=8, NB=2, NT=0, ILV=1)

if __name__ == "__main__":
    P = dict(DEF)
    out = sys.argv[1]
    for kv in sys.argv[2:]:
        k, v = kv.split("=")
        try:
            v = int(v)
        except ValueError:
            v = v.replace("+", " ")
        P[k] = v
    open(out, "w").write(generate(P))
    print("wrote", out, P)
```

```python
import sys, re

NAME = "standalone__low_rank_proj_linformer__decode"
KN = NAME + "_kernel"
ROW_E = 65536 * 2

HDR = """; Kernarg layout for this problem (64 bytes, ptrs only, base s[0:1]):
"""


class A:
    def __init__(self):
        self.l = []
    def __call__(self, s):
        m = re.search(r"offset:(\d+)", s)
        if m:
            o = int(m.group(1))
            if s.startswith("buffer_"): assert o < 4096, s
            elif s.startswith("ds_"): assert o < 65536, s
            elif s.startswith("global_"): assert o < 4096, s
        self.l.append("    " + s)
    def raw(self, s):
        self.l.append(s)
    def label(self, s):
        self.l.append(s + ":")
    def text(self):
        return "\n".join(self.l) + "\n"


def desc(name, vgpr, sgpr):
    accum = (vgpr + 3) // 4 * 4
    return f""".section .rodata,"a"
.p2align 6
.amdhsa_kernel {name}
  .amdhsa_next_free_vgpr {vgpr}
  .amdhsa_next_free_sgpr {sgpr}
  .amdhsa_accum_offset {accum}
  .amdhsa_group_segment_fixed_size 0
  .amdhsa_kernarg_size 64
  .amdhsa_user_sgpr_count 2
  .amdhsa_user_sgpr_kernarg_segment_ptr 1
  .amdhsa_system_sgpr_workgroup_id_x 1
.end_amdhsa_kernel
"""


def gen(P):
    a = A()
    WPB, NX, NB = P["WPB"], P["NX"], P["NB"]
    DYN = P["DYN"]
    kfl = " " + P["KFLAGS"] if P["KFLAGS"] else ""
    WT = WPB // 2
    NR = 65536 // NX
    tiles_wg = NR // 32
    tiles_w = tiles_wg // WT
    NWG = 32 * NX
    loglx = NX.bit_length() - 1
    vOffK, vOffE = 1, 2
    base = 4
    buf = [base + 36 * b for b in range(NB)]
    tmp = base + 36 * NB
    acc = tmp + 8
    nv = acc + 32
    vIdx, vCnt, vOne = nv, nv + 1, nv + 2
    nv += 3
    CNT = WPB * 8192
    sidx = [50 + b for b in range(NB)]
    STAMP = P.get("STAMP", 0)

    a.raw(f".globl {KN}\n.p2align 8\n.type {KN},@function\n{KN}:")
    a(f"s_cmp_ge_u32 s2, {NWG}")
    a("s_cbranch_scc1 L_done")
    a("s_load_dwordx4 s[4:7], s[0:1], 8")
    a("s_load_dwordx4 s[24:27], s[0:1], 24")
    if STAMP:
        a("s_memrealtime s[40:41]")
    a("v_lshrrev_b32 v3, 6, v0")
    a("v_and_b32 v0, 63, v0")
    a("v_readfirstlane_b32 s3, v3")
    a("v_lshrrev_b32 v3, 4, v0")
    a("v_and_b32 v2, 15, v0")
    a("v_lshlrev_b32 v1, 11, v3")
    a("v_lshl_add_u32 v1, v2, 4, v1")
    a("v_lshlrev_b32 v2, 17, v2")
    a("v_lshl_add_u32 v2, v3, 4, v2")
    a(f"s_and_b32 s30, s2, {NX-1}")
    a(f"s_lshr_b32 s32, s2, {loglx}")
    a(f"s_lshr_b32 s33, s3, {WT.bit_length()-1}")
    a(f"s_and_b32 s34, s3, {WT-1}")
    a("s_lshl_b32 s35, s32, 24")
    a(f"s_mul_i32 s36, s30, {NR*256}")
    a("s_add_u32 s35, s35, s36")
    a(f"s_mul_i32 s36, s30, {NR*2}")
    a(f"s_mov_b32 s10, {NR*256}")
    a("s_mov_b32 s11, 0x20000")
    a(f"s_mov_b32 s14, {15*ROW_E + NR*2}")
    a("s_mov_b32 s15, 0x20000")
    if DYN:
        for b in range(NB - 1):
            a(f"s_add_u32 s{sidx[b]}, s34, {b*WT}")
    else:
        a("s_lshl_b32 s16, s34, 13")
        a("s_lshl_b32 s17, s34, 6")
    if P.get("ROT"):
        a(f"s_lshl_b32 s19, s32, 3")
        a(f"s_mul_i32 s37, s33, {tiles_wg // 16 + 3}")
        a("s_add_u32 s19, s19, s37")
    a("s_cmp_eq_u32 s33, 0")
    a("s_waitcnt lgkmcnt(0)")
    a("s_cselect_b32 s8, s4, s6")
    a("s_cselect_b32 s9, s5, s7")
    a("s_cselect_b32 s12, s24, s26")
    a("s_cselect_b32 s13, s25, s27")
    a("s_add_u32 s8, s8, s35")
    a("s_addc_u32 s9, s9, 0")
    a("s_and_b32 s9, s9, 0xffff")
    a("s_add_u32 s12, s12, s36")
    a("s_addc_u32 s13, s13, 0")
    a("s_and_b32 s13, s13, 0xffff")
    stepK, stepE = WT * 8192, WT * 64

    def loads(b):
        r = buf[b]
        for j in range(8):
            a(f"buffer_load_dwordx4 v[{r+4*j}:{r+4*j+3}], v{vOffK}, s[8:11], s16 offen offset:{j*256}{kfl}")
        a(f"buffer_load_dwordx4 v[{r+32}:{r+35}], v{vOffE}, s[12:15], s17 offen")

    def issue(b):
        loads(b)
        a(f"s_add_u32 s16, s16, {stepK}")
        a(f"s_add_u32 s17, s17, {stepE}")

    def issue_dyn(b, check=True):
        if P.get("ROT"):
            a(f"s_add_u32 s17, s{sidx[b]}, s19")
            a(f"s_and_b32 s17, s17, {tiles_wg-1}")
            a(f"s_lshl_b32 s16, s17, 13")
            a(f"s_lshl_b32 s17, s17, 6")
        else:
            a(f"s_lshl_b32 s16, s{sidx[b]}, 13")
            a(f"s_lshl_b32 s17, s{sidx[b]}, 6")
        if check:
            a(f"s_cmp_lt_u32 s{sidx[b]}, {tiles_wg}")
            a("s_cselect_b32 s17, s17, 0x40000000")
            a("s_cselect_b32 s16, s16, 0x40000000")
        loads(b)

    def grab():
        a("s_mov_b64 exec, 1")
        a(f"ds_add_rtn_u32 v{vIdx}, v{vCnt}, v{vOne}")
        a("s_mov_b64 exec, -1")

    for b in range(NB - 1):
        if DYN: issue_dyn(b, check=False)
        else: issue(b)
    a("s_load_dwordx2 s[56:57], s[0:1], 0")
    a("s_load_dwordx4 s[60:63], s[0:1], 40")
    a("s_load_dwordx2 s[28:29], s[0:1], 56")
    a("s_mov_b32 s20, 0x05040100")
    a("s_mov_b32 s21, 0x07060302")
    if DYN:
        a("s_cmp_lg_u32 s3, 0")
        a("s_cbranch_scc1 L_noinit")
        a(f"v_mov_b32 v3, {CNT}")
        a(f"v_lshl_add_u32 v3, v0, 2, v3")
        a(f"v_mov_b32 v{tmp}, {(NB-1)*WT}")
        a("v_cmp_gt_u32 vcc, 2, v0")
        a("s_and_saveexec_b64 s[48:49], vcc")
        a(f"ds_write_b32 v3, v{tmp}")
        a("s_mov_b64 exec, s[48:49]")
        a.label("L_noinit")
        a(f"s_lshl_b32 s36, s33, 2")
        a(f"s_add_u32 s36, s36, {CNT}")
        a(f"v_mov_b32 v{vCnt}, s36")
        a(f"v_mov_b32 v{vOne}, 1")
    for i in range(32):
        a(f"v_mov_b32 v{acc+i}, 0")
    a("s_waitcnt lgkmcnt(0)")
    if DYN:
        a("s_barrier")
        grab()
    else:
        a(f"s_mov_b32 s18, {tiles_w // NB}")
        assert tiles_w % NB == 0, (tiles_w, NB)
    a.label("L_loop")
    for b in range(NB):
        nb = (b + NB - 1) % NB
        if DYN:
            a("s_waitcnt lgkmcnt(0)")
            a(f"v_readfirstlane_b32 s{sidx[nb]}, v{vIdx}")
            grab()
            issue_dyn(nb)
        else:
            issue(nb)
        a(f"s_waitcnt vmcnt({9*(NB-1)})")
        r = buf[b]
        def perm(dd):
            i, h = dd >> 1, dd & 1
            t = tmp + 4 * (dd & 1)
            for p in range(4):
                a(f"v_perm_b32 v{t+p}, v{r+4*(2*p+1)+i}, v{r+4*(2*p)+i}, s{20+h}")
        def mfma(dd):
            t = tmp + 4 * (dd & 1)
            a(f"v_mfma_f32_16x16x32_bf16 v[{acc+4*dd}:{acc+4*dd+3}], v[{r+32}:{r+35}], v[{t}:{t+3}], v[{acc+4*dd}:{acc+4*dd+3}]")
        perm(0); perm(1)
        for dd in range(7):
            mfma(dd)
            if dd + 2 < 8:
                perm(dd + 2)
        if b == NB - 1 and not DYN:
            a("s_sub_u32 s18, s18, 1")
        else:
            a("s_nop 0")
        a("s_nop 0")
        mfma(7)
        if DYN:
            nxt = (b + 1) % NB
            a(f"s_cmp_ge_u32 s{sidx[nxt]}, {tiles_wg}")
            a("s_cbranch_scc1 L_loopdone")
    if DYN:
        a("s_branch L_loop")
    else:
        a("s_cmp_lg_u32 s18, 0")
        a("s_cbranch_scc1 L_loop")
    a.label("L_loopdone")
    if STAMP:
        a("s_memrealtime s[42:43]")
    a("s_lshl_b32 s36, s3, 13")
    a("v_lshlrev_b32 v1, 4, v0")
    a("v_add_u32 v2, s36, v1")
    a("s_lshl_b32 s38, s32, 1")
    a("s_add_u32 s38, s38, s33")
    a(f"s_lshl_b32 s38, s38, {loglx+13}")
    a("s_waitcnt vmcnt(0) lgkmcnt(0)")
    a("s_add_u32 s8, s28, s38")
    a("s_addc_u32 s9, s29, 0")
    a("s_and_b32 s9, s9, 0xffff")
    a(f"s_mov_b32 s10, {NX*8192}")
    a("s_mov_b32 s11, 0x20000")
    a("s_nop 2")
    for dd in range(8):
        a(f"ds_write_b128 v2, v[{acc+4*dd}:{acc+4*dd+3}] offset:{dd*1024}")
    a("s_waitcnt lgkmcnt(0)")
    a("s_barrier")
    nslot = 8 // WT
    a(f"s_mul_i32 s36, s33, {WT*8192}")
    a("s_lshl_b32 s37, s34, 10")
    a("s_add_u32 s36, s36, s37")
    a("v_add_u32 v2, s36, v1")
    a("v_add_u32 v3, s37, v1")
    a("s_lshl_b32 s39, s30, 13")
    B0 = buf[0]
    for k in range(nslot):
        kb = k * WT * 1024
        for w in range(WT):
            a(f"ds_read_b128 v[{B0+4*w}:{B0+4*w+3}], v2 offset:{w*8192+kb}")
        for w in range(1, WT):
            a(f"s_waitcnt lgkmcnt({WT-1-w})")
            for i in range(4):
                a(f"v_add_f32 v{B0+i}, v{B0+i}, v{B0+4*w+i}")
        if k: a(f"s_add_u32 s39, s39, {WT*1024}")
        a(f"buffer_store_dwordx4 v[{B0}:{B0+3}], v3, s[8:11], s39 offen sc1")
        if k + 1 < nslot: a("s_nop 1")
    a("s_waitcnt vmcnt(0)")
    a("s_barrier")
    FLAG = CNT + 8
    a("s_cmp_lg_u32 s3, 0")
    a("s_cbranch_scc1 L_noatomic")
    a("s_lshl_b32 s36, s32, 2")
    a("s_add_u32 s36, s36, 128")
    a("v_mov_b32 v4, s36")
    a("v_mov_b32 v5, 1")
    a("s_mov_b64 exec, 1")
    a("global_atomic_add v6, v4, v5, s[62:63] sc0")
    a("s_waitcnt vmcnt(0)")
    a(f"v_mov_b32 v4, {FLAG}")
    a("ds_write_b32 v4, v6")
    a("s_waitcnt lgkmcnt(0)")
    a("s_mov_b64 exec, -1")
    a.label("L_noatomic")
    a("s_barrier")
    a(f"v_mov_b32 v4, {FLAG}")
    a("ds_read_b32 v4, v4")
    a("s_waitcnt lgkmcnt(0)")
    a("v_readfirstlane_b32 s36, v4")
    if STAMP:
        a("s_memrealtime s[44:45]")
    a("s_nop 3")
    a(f"s_cmp_lg_u32 s36, {NX-1}")
    a("s_cbranch_scc1 L_notlast")
    FB = 16
    for k in range(nslot):
        for p in range(NX):
            a(f"s_mov_b32 s39, {p*8192 + k*WT*1024}")
            rr = FB + (k * NX + p) * 4
            a(f"buffer_load_dwordx4 v[{rr}:{rr+3}], v3, s[8:11], s39 offen sc1")
    assert FB + nslot * NX * 4 <= acc
    SC = 0
    a("v_and_b32 v4, 15, v0")
    a("v_lshrrev_b32 v5, 4, v0")
    a("s_cmp_lg_u32 s33, 0")
    a("s_cbranch_scc1 L_fin_v")
    a("s_lshl_b32 s36, s32, 8")
    a("s_add_u32 s12, s56, s36")
    a("s_addc_u32 s13, s57, 0")
    a("s_and_b32 s13, s13, 0xffff")
    a("s_mov_b32 s14, 256")
    a("s_mov_b32 s15, 0x20000")
    a("v_lshlrev_b32 v6, 4, v4")
    a("s_lshl_b32 s36, s34, 1")
    for k in range(nslot):
        a(f"buffer_load_ushort v{acc+k}, v6, s[12:15], s36 offen offset:{k*WT*2}")
    a("s_waitcnt vmcnt(0)")
    for k in range(nslot):
        rr = FB + k * NX * 4
        for p in range(1, NX):
            for i in range(4):
                a(f"v_add_f32 v{rr+i}, v{rr+i}, v{rr+4*p+i}")
        a(f"v_cvt_pk_bf16_f32 v8, v{rr}, v{rr+1}")
        a(f"v_cvt_pk_bf16_f32 v9, v{rr+2}, v{rr+3}")
        a(f"v_lshlrev_b32 v{acc+k}, 16, v{acc+k}")
        a(f"v_lshlrev_b32 v{rr}, 16, v8")
        a(f"v_and_b32 v{rr+1}, 0xffff0000, v8")
        a(f"v_lshlrev_b32 v{rr+2}, 16, v9")
        a(f"v_and_b32 v{rr+3}, 0xffff0000, v9")
        for i in range(4):
            if k == 0:
                a(f"v_mul_f32 v{acc+8+i}, v{rr+i}, v{acc+k}")
            else:
                a(f"v_fmac_f32 v{acc+8+i}, v{rr+i}, v{acc+k}")
    S = acc + 8
    for sh in (8, 4, 2, 1):
        a("s_nop 1")
        for i in range(4):
            a(f"v_add_f32_dpp v{S+i}, v{S+i}, v{S+i} row_ror:{sh} row_mask:0xf bank_mask:0xf")
    a("v_lshlrev_b32 v7, 4, v5")
    a("s_lshl_b32 s36, s34, 6")
    a("v_add_u32 v7, s36, v7")
    a("v_cmp_eq_u32 vcc, 0, v4")
    a("s_and_saveexec_b64 s[48:49], vcc")
    a(f"ds_write_b128 v7, v[{S}:{S+3}] offset:{SC}")
    a("s_mov_b64 exec, s[48:49]")
    a("s_waitcnt lgkmcnt(0)")
    a("s_barrier")
    a("s_branch L_notlast")
    a.label("L_fin_v")
    a("s_lshl_b32 s36, s32, 8")
    a("s_add_u32 s12, s60, s36")
    a("s_addc_u32 s13, s61, 0")
    a("s_and_b32 s13, s13, 0xffff")
    a("s_mov_b32 s14, 256")
    a("s_mov_b32 s15, 0x20000")
    a("s_waitcnt vmcnt(0)")
    for k in range(nslot):
        rr = FB + k * NX * 4
        for p in range(1, NX):
            for i in range(4):
                a(f"v_add_f32 v{rr+i}, v{rr+i}, v{rr+4*p+i}")
        a(f"v_cvt_pk_bf16_f32 v8, v{rr}, v{rr+1}")
        a(f"v_cvt_pk_bf16_f32 v9, v{rr+2}, v{rr+3}")
        a(f"v_lshlrev_b32 v{rr}, 16, v8")
        a(f"v_and_b32 v{rr+1}, 0xffff0000, v8")
        a(f"v_lshlrev_b32 v{rr+2}, 16, v9")
        a(f"v_and_b32 v{rr+3}, 0xffff0000, v9")
    a("v_lshlrev_b32 v7, 2, v4")
    a("v_lshlrev_b32 v10, 4, v5")
    a("s_barrier")
    for w in range(WT):
        a(f"ds_read_b32 v{acc+w}, v7 offset:{SC+w*64}")
    for i in range(1, 4):
        a(f"v_add_u32 v{10+i}, {4*i}, v10")
    for w in range(1, WT):
        a(f"s_waitcnt lgkmcnt({WT-1-w})")
        a(f"v_add_f32 v{acc}, v{acc}, v{acc+w}")
    a(f"v_cvt_pk_bf16_f32 v8, v{acc}, v{acc}")
    a("v_lshlrev_b32 v8, 16, v8")
    a("v_mul_f32 v8, 0x3db504f3, v8")
    a("v_cvt_pk_bf16_f32 v8, v8, v8")
    a("v_lshlrev_b32 v8, 16, v8")
    a("v_mov_b32 v9, v8")
    for sh in (8, 4, 2, 1):
        a("s_nop 1")
        a(f"v_max_f32_dpp v9, v9, v9 row_ror:{sh} row_mask:0xf bank_mask:0xf")
    a("v_sub_f32 v8, v8, v9")
    a("v_mul_f32 v8, 0x3fb8aa3b, v8")
    a("v_exp_f32 v8, v8")
    a("s_nop 0")
    a("v_mov_b32 v9, v8")
    for sh in (8, 4, 2, 1):
        a("s_nop 1")
        a(f"v_add_f32_dpp v9, v9, v9 row_ror:{sh} row_mask:0xf bank_mask:0xf")
    a("v_rcp_f32 v9, v9")
    a("s_nop 0")
    a("v_mul_f32 v8, v8, v9")
    a("v_cvt_pk_bf16_f32 v8, v8, v8")
    a("v_lshlrev_b32 v8, 16, v8")
    for i in range(4):
        a(f"ds_bpermute_b32 v{10+i}, v{10+i}, v8")
    a("v_xor_b32 v6, 16, v0")
    a("v_lshlrev_b32 v6, 2, v6")
    a("v_xor_b32 v7, 32, v0")
    a("v_lshlrev_b32 v7, 2, v7")
    a("s_waitcnt lgkmcnt(0)")
    for k in range(nslot):
        rr = FB + k * NX * 4
        a(f"v_mul_f32 v{acc+k}, v10, v{rr}")
        a(f"v_fmac_f32 v{acc+k}, v11, v{rr+1}")
        a(f"v_fmac_f32 v{acc+k}, v12, v{rr+2}")
        a(f"v_fmac_f32 v{acc+k}, v13, v{rr+3}")
    for k in range(nslot):
        a(f"ds_bpermute_b32 v{acc+8+k}, v6, v{acc+k}")
    a("s_waitcnt lgkmcnt(0)")
    for k in range(nslot):
        a(f"v_add_f32 v{acc+k}, v{acc+k}, v{acc+8+k}")
    for k in range(nslot):
        a(f"ds_bpermute_b32 v{acc+8+k}, v7, v{acc+k}")
    a("s_waitcnt lgkmcnt(0)")
    for k in range(nslot):
        a(f"v_add_f32 v{acc+k}, v{acc+k}, v{acc+8+k}")
        a(f"v_cvt_pk_bf16_f32 v{acc+k}, v{acc+k}, v{acc+k}")
    a("v_lshlrev_b32 v6, 4, v4")
    a("s_lshl_b32 s36, s34, 1")
    a("v_cmp_gt_u32 vcc, 16, v0")
    a("s_and_saveexec_b64 s[48:49], vcc")
    for k in range(nslot):
        a(f"buffer_store_short v{acc+k}, v6, s[12:15], s36 offen offset:{k*WT*2}")
    a("s_mov_b64 exec, s[48:49]")
    a.label("L_notlast")
    if STAMP:
        a("s_waitcnt vmcnt(0)")
        a("s_memrealtime s[46:47]")
        a("s_getreg_b32 s37, hwreg(HW_REG_XCC_ID)")
        a("s_waitcnt lgkmcnt(0)")
        a("s_and_b32 s37, s37, 7")
        a("s_lshl_b32 s37, s37, 2")
        a("s_add_u32 s37, s37, 32")
        a("s_not_b32 s40, s40")
        a("s_mov_b64 exec, 1")
        a("v_mov_b32 v4, 0")
        a("v_mov_b32 v5, s40")
        a("global_atomic_umax v4, v5, s[62:63]")
        a("v_mov_b32 v5, s42")
        a("global_atomic_umax v4, v5, s[62:63] offset:4")
        a("v_mov_b32 v6, s37")
        a("global_atomic_umax v6, v5, s[62:63]")
        a("v_mov_b32 v7, s44")
        a("global_atomic_umax v4, v7, s[62:63] offset:8")
        a("v_mov_b32 v8, s46")
        a("global_atomic_umax v4, v8, s[62:63] offset:12")
    a.label("L_done")
    a("s_endpgm")
    lds = WPB * 8192 + 16
    hdr = HDR + f"; @launch grid=({NWG},1,1) block=({WPB*64},1,1) lds={lds}\n"
    return hdr + '.amdgcn_target "amdgcn-amd-amdhsa--gfx950"\n.text\n' + a.text() + desc(KN, nv, 70)


DEF = dict(WPB=16, NX=8, NB=2, DYN=0, KFLAGS="nt")

if __name__ == "__main__":
    P = dict(DEF)
    out = sys.argv[1]
    for kv in sys.argv[2:]:
        k, v = kv.split("=")
        try:
            v = int(v)
        except ValueError:
            v = v.replace("+", " ")
        P[k] = v
    open(out, "w").write(gen(P))
    print("wrote", out, P)
```

```python
import sys, re

NAME = "standalone__low_rank_proj_linformer__decode"
KN = NAME + "_kernel"
ROW_E = 65536 * 2

HDR = """; Kernarg layout for this problem (64 bytes, ptrs only, base s[0:1]):
"""


class A:
    def __init__(self):
        self.l = []
    def __call__(self, s):
        m = re.search(r"offset:(\d+)", s)
        if m:
            o = int(m.group(1))
            if s.startswith("buffer_"): assert o < 4096, s
            elif s.startswith("ds_"): assert o < 65536, s
            elif s.startswith("global_"): assert o < 4096, s
        self.l.append("    " + s)
    def raw(self, s):
        self.l.append(s)
    def label(self, s):
        self.l.append(s + ":")
    def text(self):
        return "\n".join(self.l) + "\n"


def desc(name, vgpr, sgpr):
    accum = (vgpr + 3) // 4 * 4
    return f""".section .rodata,"a"
.p2align 6
.amdhsa_kernel {name}
  .amdhsa_next_free_vgpr {vgpr}
  .amdhsa_next_free_sgpr {sgpr}
  .amdhsa_accum_offset {accum}
  .amdhsa_group_segment_fixed_size 0
  .amdhsa_kernarg_size 64
  .amdhsa_user_sgpr_count 2
  .amdhsa_user_sgpr_kernarg_segment_ptr 1
  .amdhsa_system_sgpr_workgroup_id_x 1
.end_amdhsa_kernel
"""


def gen(P):
    a = A()
    WPB, NX, NB = P["WPB"], P["NX"], P["NB"]
    DYN = P["DYN"]
    kfl = " " + P["KFLAGS"] if P["KFLAGS"] else ""
    WT = WPB // 2
    NR = 65536 // NX
    tiles_wg = NR // 32
    tiles_w = tiles_wg // WT
    NWG = 32 * NX
    loglx = NX.bit_length() - 1
    vOffK, vOffE = 1, 2
    base = 4
    buf = [base + 36 * b for b in range(NB)]
    tmp = base + 36 * NB
    acc = tmp + 8
    nv = acc + 32
    vIdx, vCnt, vOne = nv, nv + 1, nv + 2
    nv += 3
    CNT = WPB * 8192
    sidx = [50 + b for b in range(NB)]
    STAMP = P.get("STAMP", 0)

    a.raw(f".globl {KN}\n.p2align 8\n.type {KN},@function\n{KN}:")
    a(f"s_cmp_ge_u32 s2, {NWG}")
    a("s_cbranch_scc1 L_done")
    a("s_load_dwordx4 s[4:7], s[0:1], 8")
    a("s_load_dwordx4 s[24:27], s[0:1], 24")
    if STAMP:
        a("s_memrealtime s[40:41]")
    a("v_lshrrev_b32 v3, 6, v0")
    a("v_and_b32 v0, 63, v0")
    a("v_readfirstlane_b32 s3, v3")
    a("v_lshrrev_b32 v3, 4, v0")
    a("v_and_b32 v2, 15, v0")
    a("v_lshlrev_b32 v1, 11, v3")
    a("v_lshl_add_u32 v1, v2, 4, v1")
    a("v_lshlrev_b32 v2, 17, v2")
    a("v_lshl_add_u32 v2, v3, 4, v2")
    a(f"s_and_b32 s30, s2, {NX-1}")
    a(f"s_lshr_b32 s32, s2, {loglx}")
    a(f"s_lshr_b32 s33, s3, {WT.bit_length()-1}")
    a(f"s_and_b32 s34, s3, {WT-1}")
    a("s_lshl_b32 s35, s32, 24")
    a(f"s_mul_i32 s36, s30, {NR*256}")
    a("s_add_u32 s35, s35, s36")
    a(f"s_mul_i32 s36, s30, {NR*2}")
    a(f"s_mov_b32 s10, {NR*256}")
    a("s_mov_b32 s11, 0x20000")
    a(f"s_mov_b32 s14, {15*ROW_E + NR*2}")
    a("s_mov_b32 s15, 0x20000")
    if DYN:
        for b in range(NB - 1):
            a(f"s_add_u32 s{sidx[b]}, s34, {b*WT}")
    else:
        a("s_lshl_b32 s16, s34, 13")
        a("s_lshl_b32 s17, s34, 6")
    if P.get("ROT"):
        a(f"s_lshl_b32 s19, s32, 3")
        a(f"s_mul_i32 s37, s33, {tiles_wg // 16 + 3}")
        a("s_add_u32 s19, s19, s37")
    a("s_cmp_eq_u32 s33, 0")
    a("s_waitcnt lgkmcnt(0)")
    a("s_cselect_b32 s8, s4, s6")
    a("s_cselect_b32 s9, s5, s7")
    a("s_cselect_b32 s12, s24, s26")
    a("s_cselect_b32 s13, s25, s27")
    a("s_add_u32 s8, s8, s35")
    a("s_addc_u32 s9, s9, 0")
    a("s_and_b32 s9, s9, 0xffff")
    a("s_add_u32 s12, s12, s36")
    a("s_addc_u32 s13, s13, 0")
    a("s_and_b32 s13, s13, 0xffff")
    stepK, stepE = WT * 8192, WT * 64

    def loads(b):
        r = buf[b]
        for j in range(8):
            a(f"buffer_load_dwordx4 v[{r+4*j}:{r+4*j+3}], v{vOffK}, s[8:11], s16 offen offset:{j*256}{kfl}")
        a(f"buffer_load_dwordx4 v[{r+32}:{r+35}], v{vOffE}, s[12:15], s17 offen")

    def issue(b):
        loads(b)
        a(f"s_add_u32 s16, s16, {stepK}")
        a(f"s_add_u32 s17, s17, {stepE}")

    def issue_dyn(b, check=True):
        if P.get("ROT"):
            a(f"s_add_u32 s17, s{sidx[b]}, s19")
            a(f"s_and_b32 s17, s17, {tiles_wg-1}")
            a(f"s_lshl_b32 s16, s17, 13")
            a(f"s_lshl_b32 s17, s17, 6")
        else:
            a(f"s_lshl_b32 s16, s{sidx[b]}, 13")
            a(f"s_lshl_b32 s17, s{sidx[b]}, 6")
        if check:
            a(f"s_cmp_lt_u32 s{sidx[b]}, {tiles_wg}")
            a("s_cselect_b32 s17, s17, 0x40000000")
            a("s_cselect_b32 s16, s16, 0x40000000")
        loads(b)

    def grab():
        a("s_mov_b64 exec, 1")
        a(f"ds_add_rtn_u32 v{vIdx}, v{vCnt}, v{vOne}")
        a("s_mov_b64 exec, -1")

    for b in range(NB - 1):
        if DYN: issue_dyn(b, check=False)
        else: issue(b)
    a("s_load_dwordx2 s[56:57], s[0:1], 0")
    a("s_load_dwordx4 s[60:63], s[0:1], 40")
    a("s_load_dwordx2 s[28:29], s[0:1], 56")
    a("s_mov_b32 s20, 0x05040100")
    a("s_mov_b32 s21, 0x07060302")
    if DYN:
        a("s_cmp_lg_u32 s3, 0")
        a("s_cbranch_scc1 L_noinit")
        a(f"v_mov_b32 v3, {CNT}")
        a(f"v_lshl_add_u32 v3, v0, 2, v3")
        a(f"v_mov_b32 v{tmp}, {(NB-1)*WT}")
        a("v_cmp_gt_u32 vcc, 2, v0")
        a("s_and_saveexec_b64 s[48:49], vcc")
        a(f"ds_write_b32 v3, v{tmp}")
        a("s_mov_b64 exec, s[48:49]")
        a.label("L_noinit")
        a(f"s_lshl_b32 s36, s33, 2")
        a(f"s_add_u32 s36, s36, {CNT}")
        a(f"v_mov_b32 v{vCnt}, s36")
        a(f"v_mov_b32 v{vOne}, 1")
    for i in range(32):
        a(f"v_mov_b32 v{acc+i}, 0")
    a("s_waitcnt lgkmcnt(0)")
    if DYN:
        a("s_barrier")
        grab()
    else:
        a(f"s_mov_b32 s18, {tiles_w // NB}")
        assert tiles_w % NB == 0, (tiles_w, NB)
    a.label("L_loop")
    for b in range(NB):
        nb = (b + NB - 1) % NB
        if DYN:
            a("s_waitcnt lgkmcnt(0)")
            a(f"v_readfirstlane_b32 s{sidx[nb]}, v{vIdx}")
            grab()
            issue_dyn(nb)
        else:
            issue(nb)
        a(f"s_waitcnt vmcnt({9*(NB-1)})")
        r = buf[b]
        def perm(dd):
            i, h = dd >> 1, dd & 1
            t = tmp + 4 * (dd & 1)
            for p in range(4):
                a(f"v_perm_b32 v{t+p}, v{r+4*(2*p+1)+i}, v{r+4*(2*p)+i}, s{20+h}")
        def mfma(dd):
            t = tmp + 4 * (dd & 1)
            a(f"v_mfma_f32_16x16x32_bf16 v[{acc+4*dd}:{acc+4*dd+3}], v[{r+32}:{r+35}], v[{t}:{t+3}], v[{acc+4*dd}:{acc+4*dd+3}]")
        perm(0); perm(1)
        for dd in range(7):
            mfma(dd)
            if dd + 2 < 8:
                perm(dd + 2)
        if b == NB - 1 and not DYN:
            a("s_sub_u32 s18, s18, 1")
        else:
            a("s_nop 0")
        a("s_nop 0")
        mfma(7)
        if DYN:
            nxt = (b + 1) % NB
            a(f"s_cmp_ge_u32 s{sidx[nxt]}, {tiles_wg}")
            a("s_cbranch_scc1 L_loopdone")
    if DYN:
        a("s_branch L_loop")
    else:
        a("s_cmp_lg_u32 s18, 0")
        a("s_cbranch_scc1 L_loop")
    a.label("L_loopdone")
    a("s_lshl_b32 s36, s3, 13")
    a("v_lshlrev_b32 v1, 4, v0")
    a("v_add_u32 v2, s36, v1")
    a("s_lshl_b32 s38, s32, 1")
    a("s_add_u32 s38, s38, s33")
    a(f"s_lshl_b32 s38, s38, {loglx+13}")
    a("s_waitcnt vmcnt(0) lgkmcnt(0)")
    a("s_add_u32 s8, s28, s38")
    a("s_addc_u32 s9, s29, 0")
    a("s_and_b32 s9, s9, 0xffff")
    a(f"s_mov_b32 s10, {NX*8192}")
    a("s_mov_b32 s11, 0x20000")
    a("s_nop 2")
    for dd in range(8):
        a(f"ds_write_b128 v2, v[{acc+4*dd}:{acc+4*dd+3}] offset:{dd*1024}")
    a("s_waitcnt lgkmcnt(0)")
    a("s_barrier")
    if STAMP:
        a("s_memrealtime s[42:43]")
    nslot = 8 // WT
    a(f"s_mul_i32 s36, s33, {WT*8192}")
    a("s_lshl_b32 s37, s34, 10")
    a("s_add_u32 s36, s36, s37")
    a("v_add_u32 v2, s36, v1")
    a("v_add_u32 v3, s37, v1")
    a("s_lshl_b32 s39, s30, 13")
    B0 = buf[0]
    for k in range(nslot):
        kb = k * WT * 1024
        for w in range(WT):
            a(f"ds_read_b128 v[{B0+4*w}:{B0+4*w+3}], v2 offset:{w*8192+kb}")
        for w in range(1, WT):
            a(f"s_waitcnt lgkmcnt({WT-1-w})")
            for i in range(4):
                a(f"v_add_f32 v{B0+i}, v{B0+i}, v{B0+4*w+i}")
        if k: a(f"s_add_u32 s39, s39, {WT*1024}")
        a(f"buffer_store_dwordx4 v[{B0}:{B0+3}], v3, s[8:11], s39 offen sc1")
        if k + 1 < nslot: a("s_nop 1")
    a("s_waitcnt vmcnt(0)")
    a("s_barrier")
    FLAG = CNT + 8
    a("s_cmp_lg_u32 s3, 0")
    a("s_cbranch_scc1 L_noatomic")
    a("s_lshl_b32 s36, s32, 2")
    a("s_add_u32 s36, s36, 128")
    a("v_mov_b32 v4, s36")
    a("v_mov_b32 v5, 1")
    a("s_mov_b64 exec, 1")
    a("global_atomic_add v6, v4, v5, s[62:63] sc0")
    a("s_waitcnt vmcnt(0)")
    a(f"v_mov_b32 v4, {FLAG}")
    a("ds_write_b32 v4, v6")
    a("s_waitcnt lgkmcnt(0)")
    a("s_mov_b64 exec, -1")
    a.label("L_noatomic")
    a("s_barrier")
    a(f"v_mov_b32 v4, {FLAG}")
    a("ds_read_b32 v4, v4")
    a("s_waitcnt lgkmcnt(0)")
    a("v_readfirstlane_b32 s36, v4")
    if STAMP:
        a("s_memrealtime s[44:45]")
    a("s_nop 3")
    a(f"s_cmp_lg_u32 s36, {NX-1}")
    a("s_cbranch_scc1 L_notlast")
    FB = 16
    for k in range(nslot):
        for p in range(NX):
            a(f"s_mov_b32 s39, {p*8192 + k*WT*1024}")
            rr = FB + (k * NX + p) * 4
            a(f"buffer_load_dwordx4 v[{rr}:{rr+3}], v3, s[8:11], s39 offen sc1")
    assert FB + nslot * NX * 4 <= acc
    SC = 0
    a("v_and_b32 v4, 15, v0")
    a("v_lshrrev_b32 v5, 4, v0")
    a("s_cmp_lg_u32 s33, 0")
    a("s_cbranch_scc1 L_fin_v")
    a("s_lshl_b32 s36, s32, 8")
    a("s_add_u32 s12, s56, s36")
    a("s_addc_u32 s13, s57, 0")
    a("s_and_b32 s13, s13, 0xffff")
    a("s_mov_b32 s14, 256")
    a("s_mov_b32 s15, 0x20000")
    a("v_lshlrev_b32 v6, 4, v4")
    a("s_lshl_b32 s36, s34, 1")
    for k in range(nslot):
        a(f"buffer_load_ushort v{acc+k}, v6, s[12:15], s36 offen offset:{k*WT*2}")
    a("s_waitcnt vmcnt(0)")
    for k in range(nslot):
        rr = FB + k * NX * 4
        for p in range(1, NX):
            for i in range(4):
                a(f"v_add_f32 v{rr+i}, v{rr+i}, v{rr+4*p+i}")
        a(f"v_cvt_pk_bf16_f32 v8, v{rr}, v{rr+1}")
        a(f"v_cvt_pk_bf16_f32 v9, v{rr+2}, v{rr+3}")
        a(f"v_lshlrev_b32 v{acc+k}, 16, v{acc+k}")
        a(f"v_lshlrev_b32 v{rr}, 16, v8")
        a(f"v_and_b32 v{rr+1}, 0xffff0000, v8")
        a(f"v_lshlrev_b32 v{rr+2}, 16, v9")
        a(f"v_and_b32 v{rr+3}, 0xffff0000, v9")
        for i in range(4):
            if k == 0:
                a(f"v_mul_f32 v{acc+8+i}, v{rr+i}, v{acc+k}")
            else:
                a(f"v_fmac_f32 v{acc+8+i}, v{rr+i}, v{acc+k}")
    S = acc + 8
    for sh in (8, 4, 2, 1):
        a("s_nop 1")
        for i in range(4):
            a(f"v_add_f32_dpp v{S+i}, v{S+i}, v{S+i} row_ror:{sh} row_mask:0xf bank_mask:0xf")
    a("v_lshlrev_b32 v7, 4, v5")
    a("s_lshl_b32 s36, s34, 6")
    a("v_add_u32 v7, s36, v7")
    a("v_cmp_eq_u32 vcc, 0, v4")
    a("s_and_saveexec_b64 s[48:49], vcc")
    a(f"ds_write_b128 v7, v[{S}:{S+3}] offset:{SC}")
    a("s_mov_b64 exec, s[48:49]")
    a("s_waitcnt lgkmcnt(0)")
    a("s_barrier")
    a("s_branch L_notlast")
    a.label("L_fin_v")
    a("s_lshl_b32 s36, s32, 8")
    a("s_add_u32 s12, s60, s36")
    a("s_addc_u32 s13, s61, 0")
    a("s_and_b32 s13, s13, 0xffff")
    a("s_mov_b32 s14, 256")
    a("s_mov_b32 s15, 0x20000")
    a("s_waitcnt vmcnt(0)")
    for k in range(nslot):
        rr = FB + k * NX * 4
        for p in range(1, NX):
            for i in range(4):
                a(f"v_add_f32 v{rr+i}, v{rr+i}, v{rr+4*p+i}")
        a(f"v_cvt_pk_bf16_f32 v8, v{rr}, v{rr+1}")
        a(f"v_cvt_pk_bf16_f32 v9, v{rr+2}, v{rr+3}")
        a(f"v_lshlrev_b32 v{rr}, 16, v8")
        a(f"v_and_b32 v{rr+1}, 0xffff0000, v8")
        a(f"v_lshlrev_b32 v{rr+2}, 16, v9")
        a(f"v_and_b32 v{rr+3}, 0xffff0000, v9")
    a("v_lshlrev_b32 v7, 2, v4")
    a("v_lshlrev_b32 v10, 4, v5")
    a("s_barrier")
    for w in range(WT):
        a(f"ds_read_b32 v{acc+w}, v7 offset:{SC+w*64}")
    for i in range(1, 4):
        a(f"v_add_u32 v{10+i}, {4*i}, v10")
    for w in range(1, WT):
        a(f"s_waitcnt lgkmcnt({WT-1-w})")
        a(f"v_add_f32 v{acc}, v{acc}, v{acc+w}")
    a(f"v_cvt_pk_bf16_f32 v8, v{acc}, v{acc}")
    a("v_lshlrev_b32 v8, 16, v8")
    a("v_mul_f32 v8, 0x3db504f3, v8")
    a("v_cvt_pk_bf16_f32 v8, v8, v8")
    a("v_lshlrev_b32 v8, 16, v8")
    a("v_mov_b32 v9, v8")
    for sh in (8, 4, 2, 1):
        a("s_nop 1")
        a(f"v_max_f32_dpp v9, v9, v9 row_ror:{sh} row_mask:0xf bank_mask:0xf")
    a("v_sub_f32 v8, v8, v9")
    a("v_mul_f32 v8, 0x3fb8aa3b, v8")
    a("v_exp_f32 v8, v8")
    a("s_nop 0")
    a("v_mov_b32 v9, v8")
    for sh in (8, 4, 2, 1):
        a("s_nop 1")
        a(f"v_add_f32_dpp v9, v9, v9 row_ror:{sh} row_mask:0xf bank_mask:0xf")
    a("v_rcp_f32 v9, v9")
    a("s_nop 0")
    a("v_mul_f32 v8, v8, v9")
    a("v_cvt_pk_bf16_f32 v8, v8, v8")
    a("v_lshlrev_b32 v8, 16, v8")
    for i in range(4):
        a(f"ds_bpermute_b32 v{10+i}, v{10+i}, v8")
    a("v_xor_b32 v6, 16, v0")
    a("v_lshlrev_b32 v6, 2, v6")
    a("v_xor_b32 v7, 32, v0")
    a("v_lshlrev_b32 v7, 2, v7")
    a("s_waitcnt lgkmcnt(0)")
    for k in range(nslot):
        rr = FB + k * NX * 4
        a(f"v_mul_f32 v{acc+k}, v10, v{rr}")
        a(f"v_fmac_f32 v{acc+k}, v11, v{rr+1}")
        a(f"v_fmac_f32 v{acc+k}, v12, v{rr+2}")
        a(f"v_fmac_f32 v{acc+k}, v13, v{rr+3}")
    for k in range(nslot):
        a(f"ds_bpermute_b32 v{acc+8+k}, v6, v{acc+k}")
    a("s_waitcnt lgkmcnt(0)")
    for k in range(nslot):
        a(f"v_add_f32 v{acc+k}, v{acc+k}, v{acc+8+k}")
    for k in range(nslot):
        a(f"ds_bpermute_b32 v{acc+8+k}, v7, v{acc+k}")
    a("s_waitcnt lgkmcnt(0)")
    for k in range(nslot):
        a(f"v_add_f32 v{acc+k}, v{acc+k}, v{acc+8+k}")
        a(f"v_cvt_pk_bf16_f32 v{acc+k}, v{acc+k}, v{acc+k}")
    a("v_lshlrev_b32 v6, 4, v4")
    a("s_lshl_b32 s36, s34, 1")
    a("v_cmp_gt_u32 vcc, 16, v0")
    a("s_and_saveexec_b64 s[48:49], vcc")
    for k in range(nslot):
        a(f"buffer_store_short v{acc+k}, v6, s[12:15], s36 offen offset:{k*WT*2}")
    a("s_mov_b64 exec, s[48:49]")
    a.label("L_notlast")
    if STAMP:
        a(f"s_cmp_lg_u32 s3, {WPB-1}")
        a("s_cbranch_scc1 L_done")
        a("s_waitcnt vmcnt(0)")
        a("s_memrealtime s[46:47]")
        a("s_getreg_b32 s37, hwreg(HW_REG_XCC_ID)")
        a("s_waitcnt lgkmcnt(0)")
        a("s_and_b32 s37, s37, 7")
        a("s_lshl_b32 s37, s37, 2")
        a("s_add_u32 s37, s37, 32")
        a("s_not_b32 s40, s40")
        a("s_mov_b64 exec, 1")
        a("v_mov_b32 v4, 0")
        a("v_mov_b32 v5, s40")
        a("global_atomic_umax v4, v5, s[62:63]")
        a("v_mov_b32 v5, s42")
        a("global_atomic_umax v4, v5, s[62:63] offset:4")
        a("v_mov_b32 v6, s37")
        a("global_atomic_umax v6, v5, s[62:63]")
        a("v_mov_b32 v7, s44")
        a("global_atomic_umax v4, v7, s[62:63] offset:8")
        a("v_mov_b32 v8, s46")
        a("global_atomic_umax v4, v8, s[62:63] offset:12")
    a.label("L_done")
    a("s_endpgm")
    lds = WPB * 8192 + 16
    hdr = HDR + f"; @launch grid=({NWG},1,1) block=({WPB*64},1,1) lds={lds}\n"
    return hdr + '.amdgcn_target "amdgcn-amd-amdhsa--gfx950"\n.text\n' + a.text() + desc(KN, nv, 70)


DEF = dict(WPB=16, NX=8, NB=2, DYN=0, KFLAGS="nt")

if __name__ == "__main__":
    P = dict(DEF)
    out = sys.argv[1]
    for kv in sys.argv[2:]:
        k, v = kv.split("=")
        try:
            v = int(v)
        except ValueError:
            v = v.replace("+", " ")
        P[k] = v
    open(out, "w").write(gen(P))
    print("wrote", out, P)
```

```python
import sys, re
from gen2 import A, desc, HDR, KN, ROW_E


WS_CNT = 8 << 20


def gen(P):
    a = A()
    WPB, NX, NB, S = P["WPB"], P["NX"], P["NB"], P["S"]
    kfl = " " + P["KFLAGS"] if P["KFLAGS"] else ""
    WT = WPB // 2
    NR = 65536 // NX
    TW = NR // 32
    NP = TW - S
    NPOOL = NX * S
    NWG = 32 * NX
    loglx = NX.bit_length() - 1
    L = 9
    vOffK, vOffE = 1, 2
    base = 4
    buf = [base + 36 * b for b in range(NB)]
    tmp = base + 36 * NB
    acc = tmp + 8
    nv = acc + 32
    vT, vT1, vCnt, vOne, vZero = nv, nv + 1, nv + 2, nv + 3, nv + 4
    assert vT % 2 == 0
    vOne64 = nv + 6
    nv += 8
    CNT = WPB * 8192
    FLAG = CNT + 16
    STAMP = P.get("STAMP", 0)
    assert NP >= (NB - 1) * WT + WT

    a.raw(f".globl {KN}\n.p2align 8\n.type {KN},@function\n{KN}:")
    a(f"s_cmp_ge_u32 s2, {NWG}")
    a("s_cbranch_scc1 L_done")
    a("s_load_dwordx4 s[4:7], s[0:1], 8")
    a("s_load_dwordx4 s[24:27], s[0:1], 24")
    if STAMP:
        a("s_memrealtime s[40:41]")
    a("v_lshrrev_b32 v3, 6, v0")
    a("v_and_b32 v0, 63, v0")
    a("v_readfirstlane_b32 s3, v3")
    a("v_lshrrev_b32 v3, 4, v0")
    a("v_and_b32 v2, 15, v0")
    a("v_lshlrev_b32 v1, 11, v3")
    a("v_lshl_add_u32 v1, v2, 4, v1")
    a("v_lshlrev_b32 v2, 17, v2")
    a("v_lshl_add_u32 v2, v3, 4, v2")
    a(f"s_and_b32 s30, s2, {NX-1}")
    a(f"s_lshr_b32 s32, s2, {loglx}")
    a(f"s_lshr_b32 s33, s3, {WT.bit_length()-1}")
    a(f"s_and_b32 s34, s3, {WT-1}")
    a("s_lshl_b32 s35, s32, 24")
    a(f"s_mul_i32 s18, s30, {TW}")
    a("s_mov_b32 s10, 0x1000000")
    a("s_mov_b32 s11, 0x20000")
    a("s_mov_b32 s14, 0x200000")
    a("s_mov_b32 s15, 0x20000")
    a("s_add_u32 s19, s18, s34")
    a("s_lshl_b32 s16, s19, 13")
    a("s_lshl_b32 s17, s19, 6")
    a("s_cmp_eq_u32 s33, 0")
    a("s_waitcnt lgkmcnt(0)")
    a("s_cselect_b32 s8, s4, s6")
    a("s_cselect_b32 s9, s5, s7")
    a("s_cselect_b32 s12, s24, s26")
    a("s_cselect_b32 s13, s25, s27")
    a("s_add_u32 s8, s8, s35")
    a("s_addc_u32 s9, s9, 0")
    a("s_and_b32 s9, s9, 0xffff")
    a("s_and_b32 s13, s13, 0xffff")

    def loads(b):
        r = buf[b]
        for j in range(8):
            a(f"buffer_load_dwordx4 v[{r+4*j}:{r+4*j+3}], v{vOffK}, s[8:11], s16 offen offset:{j*256}{kfl}")
        a(f"buffer_load_dwordx4 v[{r+32}:{r+35}], v{vOffE}, s[12:15], s17 offen")

    def compute(b):
        r = buf[b]
        def perm(dd):
            i, h = dd >> 1, dd & 1
            t = tmp + 4 * (dd & 1)
            for p in range(4):
                a(f"v_perm_b32 v{t+p}, v{r+4*(2*p+1)+i}, v{r+4*(2*p)+i}, s{20+h}")
        def mfma(dd):
            t = tmp + 4 * (dd & 1)
            a(f"v_mfma_f32_16x16x32_bf16 v[{acc+4*dd}:{acc+4*dd+3}], v[{r+32}:{r+35}], v[{t}:{t+3}], v[{acc+4*dd}:{acc+4*dd+3}]")
        perm(0); perm(1)
        for dd in range(7):
            mfma(dd)
            if dd + 2 < 8:
                perm(dd + 2)
        a("s_nop 1")
        mfma(7)

    for b in range(NB - 1):
        loads(b)
        if b + 1 < NB - 1:
            a(f"s_add_u32 s16, s16, {WT*8192}")
            a(f"s_add_u32 s17, s17, {WT*64}")
    a("s_load_dwordx2 s[56:57], s[0:1], 0")
    a("s_load_dwordx4 s[60:63], s[0:1], 40")
    a("s_load_dwordx2 s[28:29], s[0:1], 56")
    a("s_mov_b32 s20, 0x05040100")
    a("s_mov_b32 s21, 0x07060302")
    a("s_cmp_lg_u32 s3, 0")
    a("s_cbranch_scc1 L_noinit")
    a(f"v_mov_b32 v3, {CNT}")
    a(f"v_mov_b32 v{tmp}, {(NB-1)*WT}")
    a(f"v_mov_b32 v{tmp+1}, 0")
    a(f"v_mov_b32 v{tmp+2}, {(NB-1)*WT}")
    a(f"v_mov_b32 v{tmp+3}, 0")
    a(f"ds_write_b128 v3, v[{tmp}:{tmp+3}]")
    a.label("L_noinit")
    a(f"s_lshl_b32 s36, s33, 3")
    a(f"s_add_u32 s36, s36, {CNT}")
    a(f"v_mov_b32 v{vCnt}, s36")
    a(f"v_mov_b32 v{vOne}, 1")
    a(f"v_mov_b32 v{vZero}, 0")
    a(f"v_mov_b32 v{vOne64}, 1")
    a(f"v_mov_b32 v{vOne64+1}, 0")
    for i in range(32):
        a(f"v_mov_b32 v{acc+i}, 0")
    a("s_waitcnt lgkmcnt(0)")
    a("s_lshl_b32 s36, s32, 1")
    a("s_add_u32 s36, s36, s33")
    a("s_lshl_b32 s36, s36, 8")
    a(f"s_add_u32 s36, s36, {WS_CNT}")
    a("s_add_u32 s52, s28, s36")
    a("s_addc_u32 s53, s29, 0")
    a("s_barrier")
    a("s_cmp_lg_u32 s3, 0")
    a("s_cbranch_scc1 L_loop0")
    a("s_lshl_b32 s36, s32, 2")
    a("s_add_u32 s36, s36, 128")
    a(f"v_mov_b32 v{tmp}, s36")
    a("s_cmp_lg_u32 s30, 0")
    a("s_cbranch_scc1 L_poll")
    a("s_mov_b64 exec, 1")
    a(f"global_store_dword v{vZero}, v{vZero}, s[52:53] sc1")
    a(f"global_store_dword v{vZero}, v{vZero}, s[52:53] offset:256 sc1")
    a("s_waitcnt vmcnt(0)")
    a(f"v_mov_b32 v{tmp+1}, 0x10000")
    a(f"global_atomic_or v{tmp}, v{tmp+1}, s[62:63]")
    a("s_branch L_setready")
    a.label("L_poll")
    a("s_mov_b64 exec, 1")
    a("s_mov_b32 s37, 200")
    a.label("L_poll1")
    a(f"global_load_dword v{tmp+1}, v{tmp}, s[62:63] sc1")
    a("s_waitcnt vmcnt(0)")
    a(f"v_readfirstlane_b32 s36, v{tmp+1}")
    a("s_sub_u32 s37, s37, 1")
    a("s_and_b32 s36, s36, 0x10000")
    a("s_cbranch_scc1 L_setready")
    a("s_cmp_lg_u32 s37, 0")
    a("s_cbranch_scc0 L_notready")
    a("s_sleep 8")
    a("s_branch L_poll1")
    a.label("L_setready")
    a(f"v_mov_b32 v{tmp}, {CNT}")
    a(f"v_mov_b32 v{tmp+2}, 0")
    a(f"v_mov_b32 v{tmp+3}, 1")
    a(f"ds_add_u64 v{tmp}, v[{tmp+2}:{tmp+3}]")
    a(f"ds_add_u64 v{tmp}, v[{tmp+2}:{tmp+3}] offset:8")
    a.label("L_notready")
    a("s_mov_b64 exec, -1")
    a.label("L_loop0")

    def ticket_lds():
        a("s_mov_b64 exec, 1")
        a(f"ds_add_rtn_u64 v[{vT}:{vT1}], v{vCnt}, v[{vOne64}:{vOne64+1}]")
        a("s_mov_b64 exec, -1")
        a("s_waitcnt lgkmcnt(0)")
        a(f"v_readfirstlane_b32 s19, v{vT}")
        a(f"v_readfirstlane_b32 s22, v{vT1}")

    def atomic():
        a("s_mov_b64 exec, 1")
        a(f"global_atomic_add v{vT}, v{vZero}, v{vOne}, s[52:53] sc0")
        a("s_mov_b64 exec, -1")

    for b in range(NB):
        nb = (b + NB - 1) % NB
        a.label(f"L_p1_{b}")
        ticket_lds()
        a("s_nop 2")
        a("s_add_u32 s36, s18, s19")
        a("s_lshl_b32 s16, s36, 13")
        a("s_lshl_b32 s17, s36, 6")
        a(f"s_cmp_ge_u32 s19, {NP-WT}")
        a(f"s_cbranch_scc1 L_sw_{b}")
        loads(nb)
        a(f"s_waitcnt vmcnt({L*(NB-1)})")
        compute(b)
    a("s_branch L_p1_0")
    for b in range(NB):
        nb = (b + NB - 1) % NB
        a.label(f"L_sw_{b}")
        a("s_cmp_eq_u32 s22, 0")
        a(f"s_cbranch_scc1 L_swn_{b}")
        atomic()
        loads(nb)
        a(f"s_waitcnt vmcnt({L*(NB-1)+1})")
        compute(b)
        a(f"s_branch L_p2_{(b+1)%NB}")
        a.label(f"L_swn_{b}")
        loads(nb)
        a(f"s_waitcnt vmcnt({L*(NB-1)})")
        compute(b)
        a(f"s_branch L_dr_{(b+1)%NB}")
    NP2 = (NB - 1) * L + min(NB - 1, 2)
    for b in range(NB):
        nb = (b + NB - 1) % NB
        a.label(f"L_p2_{b}")
        a(f"s_waitcnt vmcnt({L})")
        a(f"v_readfirstlane_b32 s19, v{vT}")
        a("s_nop 2")
        a(f"s_and_b32 s36, s19, {NX-1}")
        a(f"s_mul_i32 s36, s36, {TW}")
        a(f"s_lshr_b32 s37, s19, {loglx}")
        a("s_add_u32 s36, s36, s37")
        a(f"s_add_u32 s36, s36, {NP}")
        a("s_lshl_b32 s16, s36, 13")
        a("s_lshl_b32 s17, s36, 6")
        a(f"s_cmp_ge_u32 s19, {NPOOL}")
        a(f"s_cbranch_scc1 L_dr_{b}")
        atomic()
        loads(nb)
        a(f"s_waitcnt vmcnt({NP2})")
        compute(b)
    a("s_branch L_p2_0")
    for b in range(NB):
        a.label(f"L_dr_{b}")
        for k in range(NB - 1):
            a(f"s_waitcnt vmcnt({L*(NB-2-k)})")
            compute((b + k) % NB)
        if b + 1 < NB:
            a("s_branch L_loopdone")
    a.label("L_loopdone")
    a("s_lshl_b32 s36, s3, 13")
    a("v_lshlrev_b32 v1, 4, v0")
    a("v_add_u32 v2, s36, v1")
    a("s_lshl_b32 s38, s32, 1")
    a("s_add_u32 s38, s38, s33")
    a(f"s_lshl_b32 s38, s38, {loglx+13}")
    a("s_add_u32 s8, s28, s38")
    a("s_addc_u32 s9, s29, 0")
    a("s_and_b32 s9, s9, 0xffff")
    a(f"s_mov_b32 s10, {NX*8192}")
    a("s_mov_b32 s11, 0x20000")
    a("s_nop 2")
    for dd in range(8):
        a(f"ds_write_b128 v2, v[{acc+4*dd}:{acc+4*dd+3}] offset:{dd*1024}")
    a("s_waitcnt lgkmcnt(0)")
    a("s_barrier")
    if STAMP:
        a("s_memrealtime s[42:43]")
    nslot = 8 // WT
    a(f"s_mul_i32 s36, s33, {WT*8192}")
    a("s_lshl_b32 s37, s34, 10")
    a("s_add_u32 s36, s36, s37")
    a("v_add_u32 v2, s36, v1")
    a("v_add_u32 v3, s37, v1")
    a("s_lshl_b32 s39, s30, 13")
    B0 = buf[0]
    for k in range(nslot):
        kb = k * WT * 1024
        for w in range(WT):
            a(f"ds_read_b128 v[{B0+4*w}:{B0+4*w+3}], v2 offset:{w*8192+kb}")
        for w in range(1, WT):
            a(f"s_waitcnt lgkmcnt({WT-1-w})")
            for i in range(4):
                a(f"v_add_f32 v{B0+i}, v{B0+i}, v{B0+4*w+i}")
        if k: a(f"s_add_u32 s39, s39, {WT*1024}")
        a(f"buffer_store_dwordx4 v[{B0}:{B0+3}], v3, s[8:11], s39 offen sc1")
        if k + 1 < nslot: a("s_nop 1")
    a("s_waitcnt vmcnt(0)")
    a("s_barrier")
    a("s_cmp_lg_u32 s3, 0")
    a("s_cbranch_scc1 L_noatomic")
    a("s_lshl_b32 s36, s32, 2")
    a("s_add_u32 s36, s36, 128")
    a("v_mov_b32 v4, s36")
    a("v_mov_b32 v5, 1")
    a("s_mov_b64 exec, 1")
    a("global_atomic_add v6, v4, v5, s[62:63] sc0")
    a("s_waitcnt vmcnt(0)")
    a(f"v_mov_b32 v4, {FLAG}")
    a("ds_write_b32 v4, v6")
    a("s_waitcnt lgkmcnt(0)")
    a("s_mov_b64 exec, -1")
    a.label("L_noatomic")
    a("s_barrier")
    a(f"v_mov_b32 v4, {FLAG}")
    a("ds_read_b32 v4, v4")
    a("s_waitcnt lgkmcnt(0)")
    a("v_readfirstlane_b32 s36, v4")
    if STAMP:
        a("s_memrealtime s[44:45]")
    a("s_nop 3")
    a("s_and_b32 s36, s36, 0xffff")
    a(f"s_cmp_lg_u32 s36, {NX-1}")
    a("s_cbranch_scc1 L_notlast")
    FB = 16
    for k in range(nslot):
        for p in range(NX):
            a(f"s_mov_b32 s39, {p*8192 + k*WT*1024}")
            rr = FB + (k * NX + p) * 4
            a(f"buffer_load_dwordx4 v[{rr}:{rr+3}], v3, s[8:11], s39 offen sc1")
    assert FB + nslot * NX * 4 <= acc
    SC = 0
    a("v_and_b32 v4, 15, v0")
    a("v_lshrrev_b32 v5, 4, v0")
    a("s_cmp_lg_u32 s33, 0")
    a("s_cbranch_scc1 L_fin_v")
    a("s_lshl_b32 s36, s32, 8")
    a("s_add_u32 s12, s56, s36")
    a("s_addc_u32 s13, s57, 0")
    a("s_and_b32 s13, s13, 0xffff")
    a("s_mov_b32 s14, 256")
    a("s_mov_b32 s15, 0x20000")
    a("v_lshlrev_b32 v6, 4, v4")
    a("s_lshl_b32 s36, s34, 1")
    for k in range(nslot):
        a(f"buffer_load_ushort v{acc+k}, v6, s[12:15], s36 offen offset:{k*WT*2}")
    a("s_waitcnt vmcnt(0)")
    for k in range(nslot):
        rr = FB + k * NX * 4
        for p in range(1, NX):
            for i in range(4):
                a(f"v_add_f32 v{rr+i}, v{rr+i}, v{rr+4*p+i}")
        a(f"v_cvt_pk_bf16_f32 v8, v{rr}, v{rr+1}")
        a(f"v_cvt_pk_bf16_f32 v9, v{rr+2}, v{rr+3}")
        a(f"v_lshlrev_b32 v{acc+k}, 16, v{acc+k}")
        a(f"v_lshlrev_b32 v{rr}, 16, v8")
        a(f"v_and_b32 v{rr+1}, 0xffff0000, v8")
        a(f"v_lshlrev_b32 v{rr+2}, 16, v9")
        a(f"v_and_b32 v{rr+3}, 0xffff0000, v9")
        for i in range(4):
            if k == 0:
                a(f"v_mul_f32 v{acc+8+i}, v{rr+i}, v{acc+k}")
            else:
                a(f"v_fmac_f32 v{acc+8+i}, v{rr+i}, v{acc+k}")
    SS = acc + 8
    for sh in (8, 4, 2, 1):
        a("s_nop 1")
        for i in range(4):
            a(f"v_add_f32_dpp v{SS+i}, v{SS+i}, v{SS+i} row_ror:{sh} row_mask:0xf bank_mask:0xf")
    a("v_lshlrev_b32 v7, 4, v5")
    a("s_lshl_b32 s36, s34, 6")
    a("v_add_u32 v7, s36, v7")
    a("v_cmp_eq_u32 vcc, 0, v4")
    a("s_and_saveexec_b64 s[48:49], vcc")
    a(f"ds_write_b128 v7, v[{SS}:{SS+3}] offset:{SC}")
    a("s_mov_b64 exec, s[48:49]")
    a("s_waitcnt lgkmcnt(0)")
    a("s_barrier")
    a("s_branch L_notlast")
    a.label("L_fin_v")
    a("s_lshl_b32 s36, s32, 8")
    a("s_add_u32 s12, s60, s36")
    a("s_addc_u32 s13, s61, 0")
    a("s_and_b32 s13, s13, 0xffff")
    a("s_mov_b32 s14, 256")
    a("s_mov_b32 s15, 0x20000")
    a("s_waitcnt vmcnt(0)")
    for k in range(nslot):
        rr = FB + k * NX * 4
        for p in range(1, NX):
            for i in range(4):
                a(f"v_add_f32 v{rr+i}, v{rr+i}, v{rr+4*p+i}")
        a(f"v_cvt_pk_bf16_f32 v8, v{rr}, v{rr+1}")
        a(f"v_cvt_pk_bf16_f32 v9, v{rr+2}, v{rr+3}")
        a(f"v_lshlrev_b32 v{rr}, 16, v8")
        a(f"v_and_b32 v{rr+1}, 0xffff0000, v8")
        a(f"v_lshlrev_b32 v{rr+2}, 16, v9")
        a(f"v_and_b32 v{rr+3}, 0xffff0000, v9")
    a("v_lshlrev_b32 v7, 2, v4")
    a("v_lshlrev_b32 v10, 4, v5")
    a("s_barrier")
    for w in range(WT):
        a(f"ds_read_b32 v{acc+w}, v7 offset:{SC+w*64}")
    for i in range(1, 4):
        a(f"v_add_u32 v{10+i}, {4*i}, v10")
    for w in range(1, WT):
        a(f"s_waitcnt lgkmcnt({WT-1-w})")
        a(f"v_add_f32 v{acc}, v{acc}, v{acc+w}")
    a(f"v_cvt_pk_bf16_f32 v8, v{acc}, v{acc}")
    a("v_lshlrev_b32 v8, 16, v8")
    a("v_mul_f32 v8, 0x3db504f3, v8")
    a("v_cvt_pk_bf16_f32 v8, v8, v8")
    a("v_lshlrev_b32 v8, 16, v8")
    a("v_mov_b32 v9, v8")
    for sh in (8, 4, 2, 1):
        a("s_nop 1")
        a(f"v_max_f32_dpp v9, v9, v9 row_ror:{sh} row_mask:0xf bank_mask:0xf")
    a("v_sub_f32 v8, v8, v9")
    a("v_mul_f32 v8, 0x3fb8aa3b, v8")
    a("v_exp_f32 v8, v8")
    a("s_nop 0")
    a("v_mov_b32 v9, v8")
    for sh in (8, 4, 2, 1):
        a("s_nop 1")
        a(f"v_add_f32_dpp v9, v9, v9 row_ror:{sh} row_mask:0xf bank_mask:0xf")
    a("v_rcp_f32 v9, v9")
    a("s_nop 0")
    a("v_mul_f32 v8, v8, v9")
    a("v_cvt_pk_bf16_f32 v8, v8, v8")
    a("v_lshlrev_b32 v8, 16, v8")
    for i in range(4):
        a(f"ds_bpermute_b32 v{10+i}, v{10+i}, v8")
    a("v_xor_b32 v6, 16, v0")
    a("v_lshlrev_b32 v6, 2, v6")
    a("v_xor_b32 v7, 32, v0")
    a("v_lshlrev_b32 v7, 2, v7")
    a("s_waitcnt lgkmcnt(0)")
    for k in range(nslot):
        rr = FB + k * NX * 4
        a(f"v_mul_f32 v{acc+k}, v10, v{rr}")
        a(f"v_fmac_f32 v{acc+k}, v11, v{rr+1}")
        a(f"v_fmac_f32 v{acc+k}, v12, v{rr+2}")
        a(f"v_fmac_f32 v{acc+k}, v13, v{rr+3}")
    for k in range(nslot):
        a(f"ds_bpermute_b32 v{acc+8+k}, v6, v{acc+k}")
    a("s_waitcnt lgkmcnt(0)")
    for k in range(nslot):
        a(f"v_add_f32 v{acc+k}, v{acc+k}, v{acc+8+k}")
    for k in range(nslot):
        a(f"ds_bpermute_b32 v{acc+8+k}, v7, v{acc+k}")
    a("s_waitcnt lgkmcnt(0)")
    for k in range(nslot):
        a(f"v_add_f32 v{acc+k}, v{acc+k}, v{acc+8+k}")
        a(f"v_cvt_pk_bf16_f32 v{acc+k}, v{acc+k}, v{acc+k}")
    a("v_lshlrev_b32 v6, 4, v4")
    a("s_lshl_b32 s36, s34, 1")
    a("v_cmp_gt_u32 vcc, 16, v0")
    a("s_and_saveexec_b64 s[48:49], vcc")
    for k in range(nslot):
        a(f"buffer_store_short v{acc+k}, v6, s[12:15], s36 offen offset:{k*WT*2}")
    a("s_mov_b64 exec, s[48:49]")
    a.label("L_notlast")
    if STAMP:
        a(f"s_cmp_lg_u32 s3, {WPB-1}")
        a("s_cbranch_scc1 L_done")
        a("s_waitcnt vmcnt(0)")
        a("s_memrealtime s[46:47]")
        a("s_getreg_b32 s37, hwreg(HW_REG_XCC_ID)")
        a("s_waitcnt lgkmcnt(0)")
        a("s_and_b32 s37, s37, 7")
        a("s_lshl_b32 s37, s37, 2")
        a("s_add_u32 s37, s37, 32")
        a("s_not_b32 s40, s40")
        a("s_mov_b64 exec, 1")
        a("v_mov_b32 v4, 0")
        a("v_mov_b32 v5, s40")
        a("global_atomic_umax v4, v5, s[62:63]")
        a("v_mov_b32 v5, s42")
        a("global_atomic_umax v4, v5, s[62:63] offset:4")
        a("v_mov_b32 v6, s37")
        a("global_atomic_umax v6, v5, s[62:63]")
        a("v_mov_b32 v7, s44")
        a("global_atomic_umax v4, v7, s[62:63] offset:8")
        a("v_mov_b32 v8, s46")
        a("global_atomic_umax v4, v8, s[62:63] offset:12")
        a("v_mov_b32 v7, s22")
        a("global_atomic_add v4, v7, s[62:63] offset:16")
    a.label("L_done")
    a("s_endpgm")
    lds = WPB * 8192 + 32
    hdr = HDR + f"; @launch grid=({NWG},1,1) block=({WPB*64},1,1) lds={lds}\n"
    return hdr + '.amdgcn_target "amdgcn-amd-amdhsa--gfx950"\n.text\n' + a.text() + desc(KN, nv, 70)


DEF = dict(WPB=16, NX=8, NB=2, S=32, KFLAGS="nt")

if __name__ == "__main__":
    P = dict(DEF)
    out = sys.argv[1]
    for kv in sys.argv[2:]:
        k, v = kv.split("=")
        try:
            v = int(v)
        except ValueError:
            v = v.replace("+", " ")
        P[k] = v
    open(out, "w").write(gen(P))
    print("wrote", out, P)
```

```python
import sys, re
from gen2 import A, desc, HDR, KN, ROW_E


WS_CNT = 8 << 20


def gen(P):
    a = A()
    WPB, NX, NB, S = P["WPB"], P["NX"], P["NB"], P["S"]
    kfl = " " + P["KFLAGS"] if P["KFLAGS"] else ""
    WT = WPB // 2
    NR = 65536 // NX
    TW = NR // 32
    NP = TW - S
    NPOOL = NX * S
    NWG = 32 * NX
    loglx = NX.bit_length() - 1
    L = 9
    vOffK, vOffE = 1, 2
    base = 4
    buf = [base + 36 * b for b in range(NB)]
    tmp = base + 36 * NB
    acc = tmp + 8
    nv = acc + 32
    vT, vT1, vCnt = nv, nv + 1, nv + 2
    assert vT % 2 == 0
    vOne64 = nv + 4
    nv += 6
    CNT = WPB * 8192
    FLAG = CNT + 16
    STAMP = P.get("STAMP", 0)
    assert NP >= (NB - 1) * WT + WT

    a.raw(f".globl {KN}\n.p2align 8\n.type {KN},@function\n{KN}:")
    a(f"s_cmp_ge_u32 s2, {NWG}")
    a("s_cbranch_scc1 L_done")
    a("s_load_dwordx4 s[4:7], s[0:1], 8")
    a("s_load_dwordx4 s[24:27], s[0:1], 24")
    if STAMP:
        a("s_memrealtime s[40:41]")
    a("v_lshrrev_b32 v3, 6, v0")
    a("v_and_b32 v0, 63, v0")
    a("v_readfirstlane_b32 s3, v3")
    a("v_lshrrev_b32 v3, 4, v0")
    a("v_and_b32 v2, 15, v0")
    a("v_lshlrev_b32 v1, 11, v3")
    a("v_lshl_add_u32 v1, v2, 4, v1")
    a("v_lshlrev_b32 v2, 17, v2")
    a("v_lshl_add_u32 v2, v3, 4, v2")
    a(f"s_and_b32 s30, s2, {NX-1}")
    a(f"s_lshr_b32 s32, s2, {loglx}")
    a(f"s_lshr_b32 s33, s3, {WT.bit_length()-1}")
    a(f"s_and_b32 s34, s3, {WT-1}")
    a("s_lshl_b32 s35, s32, 24")
    a(f"s_mul_i32 s18, s30, {TW}")
    a("s_mov_b32 s10, 0x1000000")
    a("s_mov_b32 s11, 0x20000")
    a("s_mov_b32 s14, 0x200000")
    a("s_mov_b32 s15, 0x20000")
    a("s_add_u32 s19, s18, s34")
    a("s_lshl_b32 s16, s19, 13")
    a("s_lshl_b32 s17, s19, 6")
    a("s_cmp_eq_u32 s33, 0")
    a("s_waitcnt lgkmcnt(0)")
    a("s_cselect_b32 s8, s4, s6")
    a("s_cselect_b32 s9, s5, s7")
    a("s_cselect_b32 s12, s24, s26")
    a("s_cselect_b32 s13, s25, s27")
    a("s_add_u32 s8, s8, s35")
    a("s_addc_u32 s9, s9, 0")
    a("s_and_b32 s9, s9, 0xffff")
    a("s_and_b32 s13, s13, 0xffff")

    def loads(b):
        r = buf[b]
        for j in range(8):
            a(f"buffer_load_dwordx4 v[{r+4*j}:{r+4*j+3}], v{vOffK}, s[8:11], s16 offen offset:{j*256}{kfl}")
        a(f"buffer_load_dwordx4 v[{r+32}:{r+35}], v{vOffE}, s[12:15], s17 offen")

    def compute(b):
        r = buf[b]
        def perm(dd):
            i, h = dd >> 1, dd & 1
            t = tmp + 4 * (dd & 1)
            for p in range(4):
                a(f"v_perm_b32 v{t+p}, v{r+4*(2*p+1)+i}, v{r+4*(2*p)+i}, s{20+h}")
        def mfma(dd):
            t = tmp + 4 * (dd & 1)
            a(f"v_mfma_f32_16x16x32_bf16 v[{acc+4*dd}:{acc+4*dd+3}], v[{r+32}:{r+35}], v[{t}:{t+3}], v[{acc+4*dd}:{acc+4*dd+3}]")
        perm(0); perm(1)
        for dd in range(7):
            mfma(dd)
            if dd + 2 < 8:
                perm(dd + 2)
        a("s_nop 1")
        mfma(7)

    for b in range(NB - 1):
        loads(b)
        if b + 1 < NB - 1:
            a(f"s_add_u32 s16, s16, {WT*8192}")
            a(f"s_add_u32 s17, s17, {WT*64}")
    a("s_load_dwordx2 s[56:57], s[0:1], 0")
    a("s_load_dwordx4 s[60:63], s[0:1], 40")
    a("s_load_dwordx2 s[28:29], s[0:1], 56")
    a("s_mov_b32 s20, 0x05040100")
    a("s_mov_b32 s21, 0x07060302")
    a("s_cmp_lg_u32 s3, 0")
    a("s_cbranch_scc1 L_noinit")
    a(f"v_mov_b32 v3, {CNT}")
    a(f"v_mov_b32 v{tmp}, {(NB-1)*WT}")
    a(f"v_mov_b32 v{tmp+1}, 0")
    a(f"v_mov_b32 v{tmp+2}, {(NB-1)*WT}")
    a(f"v_mov_b32 v{tmp+3}, 0")
    a(f"ds_write_b128 v3, v[{tmp}:{tmp+3}]")
    a.label("L_noinit")
    a(f"s_lshl_b32 s36, s33, 3")
    a(f"s_add_u32 s36, s36, {CNT}")
    a(f"v_mov_b32 v{vCnt}, s36")
    a(f"v_mov_b32 v{vOne64}, 1")
    a(f"v_mov_b32 v{vOne64+1}, 0")
    for i in range(32):
        a(f"v_mov_b32 v{acc+i}, 0")
    a("s_waitcnt lgkmcnt(0)")
    a("s_lshl_b32 s36, s32, 10")
    a(f"s_add_u32 s36, s36, {WS_CNT}")
    a("s_add_u32 s54, s28, s36")
    a("s_addc_u32 s55, s29, 0")
    a("s_lshl_b32 s36, s33, 8")
    a("s_add_u32 s52, s54, s36")
    a("s_addc_u32 s53, s55, 0")
    a("s_barrier")
    a("s_cmp_lg_u32 s3, 0")
    a("s_cbranch_scc1 L_loop0")
    a("s_lshl_b32 s36, s32, 3")
    a("s_add_u32 s50, s62, s36")
    a("s_addc_u32 s51, s63, 0")
    a("s_mov_b32 s36, 1")
    a("s_atomic_or s36, s[50:51], 0x0 glc")
    a("s_waitcnt lgkmcnt(0)")
    a("s_and_b32 s37, s36, 1")
    a("s_cbranch_scc1 L_poll")
    a(f"v_mov_b32 v{tmp}, 0")
    a(f"v_lshlrev_b32 v{tmp+1}, 8, v0")
    a("s_mov_b64 exec, 7")
    a(f"global_store_dword v{tmp+1}, v{tmp}, s[54:55] sc1")
    a("s_mov_b64 exec, -1")
    a("s_waitcnt vmcnt(0)")
    a("s_mov_b32 s36, 2")
    a("s_atomic_or s36, s[50:51], 0x0 glc")
    a("s_waitcnt lgkmcnt(0)")
    a("s_branch L_setready")
    a.label("L_poll")
    a("s_and_b32 s37, s36, 2")
    a("s_cbranch_scc1 L_setready")
    a("s_sleep 4")
    a("s_mov_b32 s36, 0")
    a("s_atomic_or s36, s[50:51], 0x0 glc")
    a("s_waitcnt lgkmcnt(0)")
    a("s_branch L_poll")
    a.label("L_setready")
    a(f"v_mov_b32 v{tmp}, {CNT}")
    a(f"v_mov_b32 v{tmp+2}, 0")
    a(f"v_mov_b32 v{tmp+3}, 1")
    a("s_mov_b64 exec, 1")
    a(f"ds_add_u64 v{tmp}, v[{tmp+2}:{tmp+3}]")
    a(f"ds_add_u64 v{tmp}, v[{tmp+2}:{tmp+3}] offset:8")
    a("s_mov_b64 exec, -1")
    a.label("L_loop0")

    def grab_lds():
        a("s_mov_b64 exec, 1")
        a(f"ds_add_rtn_u64 v[{vT}:{vT1}], v{vCnt}, v[{vOne64}:{vOne64+1}]")
        a("s_mov_b64 exec, -1")

    def grab_pool():
        a("s_mov_b32 s23, 1")
        a("s_atomic_add s23, s[52:53], 0x0 glc")

    for b in range(NB):
        nb = (b + NB - 1) % NB
        a.label(f"L_p1_{b}")
        grab_lds()
        a("s_waitcnt lgkmcnt(0)")
        a(f"v_readfirstlane_b32 s19, v{vT}")
        a(f"v_readfirstlane_b32 s22, v{vT1}")
        a("s_nop 2")
        a("s_add_u32 s36, s18, s19")
        a("s_lshl_b32 s16, s36, 13")
        a("s_lshl_b32 s17, s36, 6")
        a(f"s_cmp_ge_u32 s19, {NP-WT}")
        a(f"s_cbranch_scc1 L_sw_{b}")
        loads(nb)
        a(f"s_waitcnt vmcnt({L*(NB-1)})")
        compute(b)
    a("s_branch L_p1_0")
    for b in range(NB):
        a.label(f"L_sw_{b}")
        a("s_cmp_lg_u32 s22, 0")
        a(f"s_cbranch_scc1 L_swok_{b}")
        a.label(f"L_swspin_{b}")
        a("s_sleep 4")
        a(f"ds_read_b64 v[{vT}:{vT1}], v{vCnt}")
        a("s_waitcnt lgkmcnt(0)")
        a(f"v_readfirstlane_b32 s22, v{vT1}")
        a("s_nop 2")
        a("s_cmp_eq_u32 s22, 0")
        a(f"s_cbranch_scc1 L_swspin_{b}")
        a.label(f"L_swok_{b}")
        grab_pool()
        a(f"s_branch L_p2m_{b}")
    for b in range(NB):
        nb = (b + NB - 1) % NB
        a.label(f"L_p2_{b}")
        a("s_waitcnt lgkmcnt(0)")
        a(f"s_cmp_ge_u32 s23, {NPOOL}")
        a(f"s_cbranch_scc1 L_dr_{b}")
        a(f"s_and_b32 s36, s23, {NX-1}")
        a(f"s_mul_i32 s36, s36, {TW}")
        a(f"s_lshr_b32 s37, s23, {loglx}")
        a("s_add_u32 s36, s36, s37")
        a(f"s_add_u32 s36, s36, {NP}")
        a("s_lshl_b32 s16, s36, 13")
        a("s_lshl_b32 s17, s36, 6")
        grab_pool()
        a.label(f"L_p2m_{b}")
        loads(nb)
        a(f"s_waitcnt vmcnt({L*(NB-1)})")
        compute(b)
    a("s_branch L_p2_0")
    for b in range(NB):
        a.label(f"L_dr_{b}")
        for k in range(NB - 1):
            a(f"s_waitcnt vmcnt({L*(NB-2-k)})")
            compute((b + k) % NB)
        if b + 1 < NB:
            a("s_branch L_loopdone")
    a.label("L_loopdone")
    a("s_lshl_b32 s36, s3, 13")
    a("v_lshlrev_b32 v1, 4, v0")
    a("v_add_u32 v2, s36, v1")
    a("s_lshl_b32 s38, s32, 1")
    a("s_add_u32 s38, s38, s33")
    a(f"s_lshl_b32 s38, s38, {loglx+13}")
    a("s_add_u32 s8, s28, s38")
    a("s_addc_u32 s9, s29, 0")
    a("s_and_b32 s9, s9, 0xffff")
    a(f"s_mov_b32 s10, {NX*8192}")
    a("s_mov_b32 s11, 0x20000")
    a("s_nop 2")
    for dd in range(8):
        a(f"ds_write_b128 v2, v[{acc+4*dd}:{acc+4*dd+3}] offset:{dd*1024}")
    a("s_waitcnt lgkmcnt(0)")
    a("s_barrier")
    if STAMP:
        a("s_memrealtime s[42:43]")
    nslot = 8 // WT
    a(f"s_mul_i32 s36, s33, {WT*8192}")
    a("s_lshl_b32 s37, s34, 10")
    a("s_add_u32 s36, s36, s37")
    a("v_add_u32 v2, s36, v1")
    a("v_add_u32 v3, s37, v1")
    a("s_lshl_b32 s39, s30, 13")
    B0 = buf[0]
    for k in range(nslot):
        kb = k * WT * 1024
        for w in range(WT):
            a(f"ds_read_b128 v[{B0+4*w}:{B0+4*w+3}], v2 offset:{w*8192+kb}")
        for w in range(1, WT):
            a(f"s_waitcnt lgkmcnt({WT-1-w})")
            for i in range(4):
                a(f"v_add_f32 v{B0+i}, v{B0+i}, v{B0+4*w+i}")
        if k: a(f"s_add_u32 s39, s39, {WT*1024}")
        a(f"buffer_store_dwordx4 v[{B0}:{B0+3}], v3, s[8:11], s39 offen sc1")
        if k + 1 < nslot: a("s_nop 1")
    a("s_waitcnt vmcnt(0)")
    a("s_barrier")
    a("s_cmp_lg_u32 s3, 0")
    a("s_cbranch_scc1 L_noatomic")
    a("s_mov_b32 s36, 1")
    a("s_atomic_add s36, s[54:55], 0x200 glc")
    a(f"v_mov_b32 v4, {FLAG}")
    a("s_waitcnt lgkmcnt(0)")
    a("v_mov_b32 v6, s36")
    a("ds_write_b32 v4, v6")
    a("s_waitcnt lgkmcnt(0)")
    a.label("L_noatomic")
    a("s_barrier")
    a(f"v_mov_b32 v4, {FLAG}")
    a("ds_read_b32 v4, v4")
    a("s_waitcnt lgkmcnt(0)")
    a("v_readfirstlane_b32 s36, v4")
    if STAMP:
        a("s_memrealtime s[44:45]")
    a("s_nop 3")
    a(f"s_cmp_lg_u32 s36, {NX-1}")
    a("s_cbranch_scc1 L_notlast")
    FB = 16
    for k in range(nslot):
        for p in range(NX):
            a(f"s_mov_b32 s39, {p*8192 + k*WT*1024}")
            rr = FB + (k * NX + p) * 4
            a(f"buffer_load_dwordx4 v[{rr}:{rr+3}], v3, s[8:11], s39 offen sc1")
    assert FB + nslot * NX * 4 <= acc
    SC = 0
    a("v_and_b32 v4, 15, v0")
    a("v_lshrrev_b32 v5, 4, v0")
    a("s_cmp_lg_u32 s33, 0")
    a("s_cbranch_scc1 L_fin_v")
    a("s_lshl_b32 s36, s32, 8")
    a("s_add_u32 s12, s56, s36")
    a("s_addc_u32 s13, s57, 0")
    a("s_and_b32 s13, s13, 0xffff")
    a("s_mov_b32 s14, 256")
    a("s_mov_b32 s15, 0x20000")
    a("v_lshlrev_b32 v6, 4, v4")
    a("s_lshl_b32 s36, s34, 1")
    for k in range(nslot):
        a(f"buffer_load_ushort v{acc+k}, v6, s[12:15], s36 offen offset:{k*WT*2}")
    a("s_waitcnt vmcnt(0)")
    for k in range(nslot):
        rr = FB + k * NX * 4
        for p in range(1, NX):
            for i in range(4):
                a(f"v_add_f32 v{rr+i}, v{rr+i}, v{rr+4*p+i}")
        a(f"v_cvt_pk_bf16_f32 v8, v{rr}, v{rr+1}")
        a(f"v_cvt_pk_bf16_f32 v9, v{rr+2}, v{rr+3}")
        a(f"v_lshlrev_b32 v{acc+k}, 16, v{acc+k}")
        a(f"v_lshlrev_b32 v{rr}, 16, v8")
        a(f"v_and_b32 v{rr+1}, 0xffff0000, v8")
        a(f"v_lshlrev_b32 v{rr+2}, 16, v9")
        a(f"v_and_b32 v{rr+3}, 0xffff0000, v9")
        for i in range(4):
            if k == 0:
                a(f"v_mul_f32 v{acc+8+i}, v{rr+i}, v{acc+k}")
            else:
                a(f"v_fmac_f32 v{acc+8+i}, v{rr+i}, v{acc+k}")
    SS = acc + 8
    for sh in (8, 4, 2, 1):
        a("s_nop 1")
        for i in range(4):
            a(f"v_add_f32_dpp v{SS+i}, v{SS+i}, v{SS+i} row_ror:{sh} row_mask:0xf bank_mask:0xf")
    a("v_lshlrev_b32 v7, 4, v5")
    a("s_lshl_b32 s36, s34, 6")
    a("v_add_u32 v7, s36, v7")
    a("v_cmp_eq_u32 vcc, 0, v4")
    a("s_and_saveexec_b64 s[48:49], vcc")
    a(f"ds_write_b128 v7, v[{SS}:{SS+3}] offset:{SC}")
    a("s_mov_b64 exec, s[48:49]")
    a("s_waitcnt lgkmcnt(0)")
    a("s_barrier")
    a("s_branch L_notlast")
    a.label("L_fin_v")
    a("s_lshl_b32 s36, s32, 8")
    a("s_add_u32 s12, s60, s36")
    a("s_addc_u32 s13, s61, 0")
    a("s_and_b32 s13, s13, 0xffff")
    a("s_mov_b32 s14, 256")
    a("s_mov_b32 s15, 0x20000")
    a("s_waitcnt vmcnt(0)")
    for k in range(nslot):
        rr = FB + k * NX * 4
        for p in range(1, NX):
            for i in range(4):
                a(f"v_add_f32 v{rr+i}, v{rr+i}, v{rr+4*p+i}")
        a(f"v_cvt_pk_bf16_f32 v8, v{rr}, v{rr+1}")
        a(f"v_cvt_pk_bf16_f32 v9, v{rr+2}, v{rr+3}")
        a(f"v_lshlrev_b32 v{rr}, 16, v8")
        a(f"v_and_b32 v{rr+1}, 0xffff0000, v8")
        a(f"v_lshlrev_b32 v{rr+2}, 16, v9")
        a(f"v_and_b32 v{rr+3}, 0xffff0000, v9")
    a("v_lshlrev_b32 v7, 2, v4")
    a("v_lshlrev_b32 v10, 4, v5")
    a("s_barrier")
    for w in range(WT):
        a(f"ds_read_b32 v{acc+w}, v7 offset:{SC+w*64}")
    for i in range(1, 4):
        a(f"v_add_u32 v{10+i}, {4*i}, v10")
    for w in range(1, WT):
        a(f"s_waitcnt lgkmcnt({WT-1-w})")
        a(f"v_add_f32 v{acc}, v{acc}, v{acc+w}")
    a(f"v_cvt_pk_bf16_f32 v8, v{acc}, v{acc}")
    a("v_lshlrev_b32 v8, 16, v8")
    a("v_mul_f32 v8, 0x3db504f3, v8")
    a("v_cvt_pk_bf16_f32 v8, v8, v8")
    a("v_lshlrev_b32 v8, 16, v8")
    a("v_mov_b32 v9, v8")
    for sh in (8, 4, 2, 1):
        a("s_nop 1")
        a(f"v_max_f32_dpp v9, v9, v9 row_ror:{sh} row_mask:0xf bank_mask:0xf")
    a("v_sub_f32 v8, v8, v9")
    a("v_mul_f32 v8, 0x3fb8aa3b, v8")
    a("v_exp_f32 v8, v8")
    a("s_nop 0")
    a("v_mov_b32 v9, v8")
    for sh in (8, 4, 2, 1):
        a("s_nop 1")
        a(f"v_add_f32_dpp v9, v9, v9 row_ror:{sh} row_mask:0xf bank_mask:0xf")
    a("v_rcp_f32 v9, v9")
    a("s_nop 0")
    a("v_mul_f32 v8, v8, v9")
    a("v_cvt_pk_bf16_f32 v8, v8, v8")
    a("v_lshlrev_b32 v8, 16, v8")
    for i in range(4):
        a(f"ds_bpermute_b32 v{10+i}, v{10+i}, v8")
    a("v_xor_b32 v6, 16, v0")
    a("v_lshlrev_b32 v6, 2, v6")
    a("v_xor_b32 v7, 32, v0")
    a("v_lshlrev_b32 v7, 2, v7")
    a("s_waitcnt lgkmcnt(0)")
    for k in range(nslot):
        rr = FB + k * NX * 4
        a(f"v_mul_f32 v{acc+k}, v10, v{rr}")
        a(f"v_fmac_f32 v{acc+k}, v11, v{rr+1}")
        a(f"v_fmac_f32 v{acc+k}, v12, v{rr+2}")
        a(f"v_fmac_f32 v{acc+k}, v13, v{rr+3}")
    for k in range(nslot):
        a(f"ds_bpermute_b32 v{acc+8+k}, v6, v{acc+k}")
    a("s_waitcnt lgkmcnt(0)")
    for k in range(nslot):
        a(f"v_add_f32 v{acc+k}, v{acc+k}, v{acc+8+k}")
    for k in range(nslot):
        a(f"ds_bpermute_b32 v{acc+8+k}, v7, v{acc+k}")
    a("s_waitcnt lgkmcnt(0)")
    for k in range(nslot):
        a(f"v_add_f32 v{acc+k}, v{acc+k}, v{acc+8+k}")
        a(f"v_cvt_pk_bf16_f32 v{acc+k}, v{acc+k}, v{acc+k}")
    a("v_lshlrev_b32 v6, 4, v4")
    a("s_lshl_b32 s36, s34, 1")
    a("v_cmp_gt_u32 vcc, 16, v0")
    a("s_and_saveexec_b64 s[48:49], vcc")
    for k in range(nslot):
        a(f"buffer_store_short v{acc+k}, v6, s[12:15], s36 offen offset:{k*WT*2}")
    a("s_mov_b64 exec, s[48:49]")
    a.label("L_notlast")
    if STAMP:
        a(f"s_cmp_lg_u32 s3, {WPB-1}")
        a("s_cbranch_scc1 L_done")
        a("s_waitcnt vmcnt(0)")
        a("s_memrealtime s[46:47]")
        a("s_getreg_b32 s37, hwreg(HW_REG_XCC_ID)")
        a("s_waitcnt lgkmcnt(0)")
        a("s_lshl_b32 s36, s2, 5")
        a("s_add_u32 s36, s36, 0x10000000")
        a("s_add_u32 s8, s28, s36")
        a("s_addc_u32 s9, s29, 0")
        a("s_and_b32 s9, s9, 0xffff")
        a("s_mov_b32 s10, 32")
        a("s_mov_b32 s11, 0x20000")
        a("v_mov_b32 v4, s40")
        a("v_mov_b32 v5, s42")
        a("v_mov_b32 v6, s44")
        a("v_mov_b32 v7, s46")
        a("v_mov_b32 v8, s37")
        a("v_mov_b32 v9, 0")
        a("s_mov_b64 exec, 1")
        a("buffer_store_dwordx4 v[4:7], v9, s[8:11], 0 offen")
        a("buffer_store_dword v8, v9, s[8:11], 0 offen offset:16")
    a.label("L_done")
    a("s_endpgm")
    lds = WPB * 8192 + 32
    hdr = HDR + f"; @launch grid=({NWG},1,1) block=({WPB*64},1,1) lds={lds}\n"
    return hdr + '.amdgcn_target "amdgcn-amd-amdhsa--gfx950"\n.text\n' + a.text() + desc(KN, nv, 70)


DEF = dict(WPB=16, NX=8, NB=2, S=32, KFLAGS="nt")

if __name__ == "__main__":
    P = dict(DEF)
    out = sys.argv[1]
    for kv in sys.argv[2:]:
        k, v = kv.split("=")
        try:
            v = int(v)
        except ValueError:
            v = v.replace("+", " ")
        P[k] = v
    open(out, "w").write(gen(P))
    print("wrote", out, P)
```

```python
import sys, re
from gen2 import A, desc, HDR, KN, ROW_E


WS_CNT = 8 << 20


def gen(P):
    a = A()
    WPB, NX, NB, S = P["WPB"], P["NX"], P["NB"], P["S"]
    kfl = " " + P["KFLAGS"] if P["KFLAGS"] else ""
    WT = WPB // 2
    NR = 65536 // NX
    TW = NR // 32
    NP = TW - S
    NPOOL = NX * S
    NWG = 32 * NX
    loglx = NX.bit_length() - 1
    L = 9
    vOffK, vOffE = 1, 2
    base = 4
    buf = [base + 36 * b for b in range(NB)]
    tmp = base + 36 * NB
    acc = tmp + 8
    nv = acc + 32
    vT, vT1, vCnt = nv, nv + 1, nv + 2
    assert vT % 2 == 0
    vOne64 = nv + 4
    nv += 6
    CNT = WPB * 8192
    FLAG = CNT + 16
    STAMP = P.get("STAMP", 0)
    assert NP >= (NB - 1) * WT + WT

    a.raw(f".globl {KN}\n.p2align 8\n.type {KN},@function\n{KN}:")
    a(f"s_cmp_ge_u32 s2, {NWG}")
    a("s_cbranch_scc1 L_done")
    a("s_load_dwordx4 s[4:7], s[0:1], 8")
    a("s_load_dwordx4 s[24:27], s[0:1], 24")
    if STAMP:
        a("s_memrealtime s[40:41]")
    a("v_lshrrev_b32 v3, 6, v0")
    a("v_and_b32 v0, 63, v0")
    a("v_readfirstlane_b32 s3, v3")
    a("v_lshrrev_b32 v3, 4, v0")
    a("v_and_b32 v2, 15, v0")
    a("v_lshlrev_b32 v1, 11, v3")
    a("v_lshl_add_u32 v1, v2, 4, v1")
    a("v_lshlrev_b32 v2, 17, v2")
    a("v_lshl_add_u32 v2, v3, 4, v2")
    a(f"s_and_b32 s30, s2, {NX-1}")
    a(f"s_lshr_b32 s32, s2, {loglx}")
    a(f"s_lshr_b32 s33, s3, {WT.bit_length()-1}")
    a(f"s_and_b32 s34, s3, {WT-1}")
    a("s_lshl_b32 s35, s32, 24")
    a(f"s_mul_i32 s18, s30, {TW}")
    a("s_mov_b32 s10, 0x1000000")
    a("s_mov_b32 s11, 0x20000")
    a("s_mov_b32 s14, 0x200000")
    a("s_mov_b32 s15, 0x20000")
    a("s_add_u32 s19, s18, s34")
    a("s_lshl_b32 s16, s19, 13")
    a("s_lshl_b32 s17, s19, 6")
    a("s_cmp_eq_u32 s33, 0")
    a("s_waitcnt lgkmcnt(0)")
    a("s_cselect_b32 s8, s4, s6")
    a("s_cselect_b32 s9, s5, s7")
    a("s_cselect_b32 s12, s24, s26")
    a("s_cselect_b32 s13, s25, s27")
    a("s_add_u32 s8, s8, s35")
    a("s_addc_u32 s9, s9, 0")
    a("s_and_b32 s9, s9, 0xffff")
    a("s_and_b32 s13, s13, 0xffff")

    def loads(b):
        r = buf[b]
        for j in range(8):
            a(f"buffer_load_dwordx4 v[{r+4*j}:{r+4*j+3}], v{vOffK}, s[8:11], s16 offen offset:{j*256}{kfl}")
        a(f"buffer_load_dwordx4 v[{r+32}:{r+35}], v{vOffE}, s[12:15], s17 offen")

    def compute(b):
        r = buf[b]
        def perm(dd):
            i, h = dd >> 1, dd & 1
            t = tmp + 4 * (dd & 1)
            for p in range(4):
                a(f"v_perm_b32 v{t+p}, v{r+4*(2*p+1)+i}, v{r+4*(2*p)+i}, s{20+h}")
        def mfma(dd):
            t = tmp + 4 * (dd & 1)
            a(f"v_mfma_f32_16x16x32_bf16 v[{acc+4*dd}:{acc+4*dd+3}], v[{r+32}:{r+35}], v[{t}:{t+3}], v[{acc+4*dd}:{acc+4*dd+3}]")
        perm(0); perm(1)
        for dd in range(7):
            mfma(dd)
            if dd + 2 < 8:
                perm(dd + 2)
        a("s_nop 1")
        mfma(7)

    for b in range(NB - 1):
        loads(b)
        if b + 1 < NB - 1:
            a(f"s_add_u32 s16, s16, {WT*8192}")
            a(f"s_add_u32 s17, s17, {WT*64}")
    a("s_load_dwordx2 s[56:57], s[0:1], 0")
    a("s_load_dwordx4 s[60:63], s[0:1], 40")
    a("s_load_dwordx2 s[28:29], s[0:1], 56")
    a("s_mov_b32 s20, 0x05040100")
    a("s_mov_b32 s21, 0x07060302")
    a("s_cmp_lg_u32 s3, 0")
    a("s_cbranch_scc1 L_noinit")
    a(f"v_mov_b32 v3, {CNT}")
    a(f"v_mov_b32 v{tmp}, {(NB-1)*WT}")
    a(f"v_mov_b32 v{tmp+1}, 0")
    a(f"v_mov_b32 v{tmp+2}, {(NB-1)*WT}")
    a(f"v_mov_b32 v{tmp+3}, 0")
    a(f"ds_write_b128 v3, v[{tmp}:{tmp+3}]")
    a.label("L_noinit")
    a(f"s_lshl_b32 s36, s33, 3")
    a(f"s_add_u32 s36, s36, {CNT}")
    a(f"v_mov_b32 v{vCnt}, s36")
    a(f"v_mov_b32 v{vOne64}, 1")
    a(f"v_mov_b32 v{vOne64+1}, 0")
    for i in range(32):
        a(f"v_mov_b32 v{acc+i}, 0")
    a("s_waitcnt lgkmcnt(0)")
    a("s_lshl_b32 s36, s32, 10")
    a(f"s_add_u32 s36, s36, {WS_CNT}")
    a("s_add_u32 s54, s28, s36")
    a("s_addc_u32 s55, s29, 0")
    a("s_lshl_b32 s36, s33, 8")
    a("s_add_u32 s52, s54, s36")
    a("s_addc_u32 s53, s55, 0")
    a("s_barrier")
    a("s_cmp_lg_u32 s3, 0")
    a("s_cbranch_scc1 L_loop0")
    a("s_lshl_b32 s36, s32, 3")
    a("s_add_u32 s50, s62, s36")
    a("s_addc_u32 s51, s63, 0")
    a("s_mov_b32 s36, 1")
    a("s_atomic_or s36, s[50:51], 0x0 glc")
    a("s_waitcnt lgkmcnt(0)")
    a("s_and_b32 s37, s36, 1")
    a("s_cbranch_scc1 L_poll")
    a(f"v_mov_b32 v{tmp}, 0")
    a(f"v_lshlrev_b32 v{tmp+1}, 8, v0")
    a("s_mov_b64 exec, 7")
    a(f"global_store_dword v{tmp+1}, v{tmp}, s[54:55] sc1")
    a("s_mov_b64 exec, -1")
    a("s_waitcnt vmcnt(0)")
    a("s_mov_b32 s36, 2")
    a("s_atomic_or s36, s[50:51], 0x0 glc")
    a("s_waitcnt lgkmcnt(0)")
    a("s_branch L_setready")
    a.label("L_poll")
    a("s_and_b32 s37, s36, 2")
    a("s_cbranch_scc1 L_setready")
    a("s_sleep 4")
    a("s_mov_b32 s36, 0")
    a("s_atomic_or s36, s[50:51], 0x0 glc")
    a("s_waitcnt lgkmcnt(0)")
    a("s_branch L_poll")
    a.label("L_setready")
    a(f"v_mov_b32 v{tmp}, {CNT}")
    a(f"v_mov_b32 v{tmp+2}, 0")
    a(f"v_mov_b32 v{tmp+3}, 1")
    a("s_mov_b64 exec, 1")
    a(f"ds_add_u64 v{tmp}, v[{tmp+2}:{tmp+3}]")
    a(f"ds_add_u64 v{tmp}, v[{tmp+2}:{tmp+3}] offset:8")
    a("s_mov_b64 exec, -1")
    a.label("L_loop0")

    def grab_lds():
        a("s_mov_b64 exec, 1")
        a(f"ds_add_rtn_u64 v[{vT}:{vT1}], v{vCnt}, v[{vOne64}:{vOne64+1}]")
        a("s_mov_b64 exec, -1")

    def grab_pool():
        a("s_mov_b32 s23, 1")
        a("s_atomic_add s23, s[52:53], 0x0 glc")

    for b in range(NB):
        nb = (b + NB - 1) % NB
        a.label(f"L_p1_{b}")
        grab_lds()
        a("s_waitcnt lgkmcnt(0)")
        a(f"v_readfirstlane_b32 s19, v{vT}")
        a(f"v_readfirstlane_b32 s22, v{vT1}")
        a("s_nop 2")
        a("s_add_u32 s36, s18, s19")
        a("s_lshl_b32 s16, s36, 13")
        a("s_lshl_b32 s17, s36, 6")
        a(f"s_cmp_ge_u32 s19, {NP-WT}")
        a(f"s_cbranch_scc1 L_sw_{b}")
        loads(nb)
        a(f"s_waitcnt vmcnt({L*(NB-1)})")
        compute(b)
    a("s_branch L_p1_0")
    for b in range(NB):
        a.label(f"L_sw_{b}")
        a("s_cmp_lg_u32 s22, 0")
        a(f"s_cbranch_scc1 L_swok_{b}")
        a.label(f"L_swspin_{b}")
        a("s_sleep 4")
        a(f"ds_read_b64 v[{vT}:{vT1}], v{vCnt}")
        a("s_waitcnt lgkmcnt(0)")
        a(f"v_readfirstlane_b32 s22, v{vT1}")
        a("s_nop 2")
        a("s_cmp_eq_u32 s22, 0")
        a(f"s_cbranch_scc1 L_swspin_{b}")
        a.label(f"L_swok_{b}")
        grab_pool()
        a(f"s_branch L_p2m_{b}")
    for b in range(NB):
        nb = (b + NB - 1) % NB
        a.label(f"L_p2_{b}")
        a("s_waitcnt lgkmcnt(0)")
        a(f"s_cmp_ge_u32 s23, {NPOOL}")
        a(f"s_cbranch_scc1 L_dr_{b}")
        a(f"s_and_b32 s36, s23, {NX-1}")
        a(f"s_mul_i32 s36, s36, {TW}")
        a(f"s_lshr_b32 s37, s23, {loglx}")
        a("s_add_u32 s36, s36, s37")
        a(f"s_add_u32 s36, s36, {NP}")
        a("s_lshl_b32 s16, s36, 13")
        a("s_lshl_b32 s17, s36, 6")
        grab_pool()
        a.label(f"L_p2m_{b}")
        loads(nb)
        a(f"s_waitcnt vmcnt({L*(NB-1)})")
        compute(b)
    a("s_branch L_p2_0")
    for b in range(NB):
        a.label(f"L_dr_{b}")
        for k in range(NB - 1):
            a(f"s_waitcnt vmcnt({L*(NB-2-k)})")
            compute((b + k) % NB)
        if b + 1 < NB:
            a("s_branch L_loopdone")
    a.label("L_loopdone")
    a("s_lshl_b32 s36, s3, 13")
    a("v_lshlrev_b32 v1, 4, v0")
    a("v_add_u32 v2, s36, v1")
    a("s_lshl_b32 s38, s32, 1")
    a("s_add_u32 s38, s38, s33")
    a(f"s_lshl_b32 s38, s38, {loglx+13}")
    a("s_add_u32 s8, s28, s38")
    a("s_addc_u32 s9, s29, 0")
    a("s_and_b32 s9, s9, 0xffff")
    a(f"s_mov_b32 s10, {NX*8192}")
    a("s_mov_b32 s11, 0x20000")
    a("s_nop 2")
    for dd in range(8):
        a(f"ds_write_b128 v2, v[{acc+4*dd}:{acc+4*dd+3}] offset:{dd*1024}")
    a("s_waitcnt lgkmcnt(0)")
    a("s_barrier")
    if STAMP:
        a("s_memrealtime s[42:43]")
    nslot = 8 // WT
    a(f"s_mul_i32 s36, s33, {WT*8192}")
    a("s_lshl_b32 s37, s34, 10")
    a("s_add_u32 s36, s36, s37")
    a("v_add_u32 v2, s36, v1")
    a("v_add_u32 v3, s37, v1")
    a("s_lshl_b32 s39, s30, 13")
    B0 = buf[0]
    for k in range(nslot):
        kb = k * WT * 1024
        for w in range(WT):
            a(f"ds_read_b128 v[{B0+4*w}:{B0+4*w+3}], v2 offset:{w*8192+kb}")
        for w in range(1, WT):
            a(f"s_waitcnt lgkmcnt({WT-1-w})")
            for i in range(4):
                a(f"v_add_f32 v{B0+i}, v{B0+i}, v{B0+4*w+i}")
        if k: a(f"s_add_u32 s39, s39, {WT*1024}")
        a(f"buffer_store_dwordx4 v[{B0}:{B0+3}], v3, s[8:11], s39 offen sc1")
        if k + 1 < nslot: a("s_nop 1")
    a("s_waitcnt vmcnt(0)")
    a("s_barrier")
    a("s_cmp_lg_u32 s3, 0")
    a("s_cbranch_scc1 L_noatomic")
    a("s_mov_b32 s36, 1")
    a("s_atomic_add s36, s[54:55], 0x200 glc")
    a(f"v_mov_b32 v4, {FLAG}")
    a("s_waitcnt lgkmcnt(0)")
    a("v_mov_b32 v6, s36")
    a("ds_write_b32 v4, v6")
    a("s_waitcnt lgkmcnt(0)")
    a.label("L_noatomic")
    a("s_barrier")
    a(f"v_mov_b32 v4, {FLAG}")
    a("ds_read_b32 v4, v4")
    a("s_waitcnt lgkmcnt(0)")
    a("v_readfirstlane_b32 s36, v4")
    if STAMP:
        a("s_memrealtime s[44:45]")
    a("s_nop 3")
    a(f"s_cmp_lg_u32 s36, {NX-1}")
    a("s_cbranch_scc1 L_notlast")
    FB = 16
    for k in range(nslot):
        for p in range(NX):
            a(f"s_mov_b32 s39, {p*8192 + k*WT*1024}")
            rr = FB + (k * NX + p) * 4
            a(f"buffer_load_dwordx4 v[{rr}:{rr+3}], v3, s[8:11], s39 offen sc1")
    assert FB + nslot * NX * 4 <= acc
    SC = 0
    a("v_and_b32 v4, 15, v0")
    a("v_lshrrev_b32 v5, 4, v0")
    a("s_cmp_lg_u32 s33, 0")
    a("s_cbranch_scc1 L_fin_v")
    a("s_lshl_b32 s36, s32, 8")
    a("s_add_u32 s12, s56, s36")
    a("s_addc_u32 s13, s57, 0")
    a("s_and_b32 s13, s13, 0xffff")
    a("s_mov_b32 s14, 256")
    a("s_mov_b32 s15, 0x20000")
    a("v_lshlrev_b32 v6, 4, v4")
    a("s_lshl_b32 s36, s34, 1")
    for k in range(nslot):
        a(f"buffer_load_ushort v{acc+k}, v6, s[12:15], s36 offen offset:{k*WT*2}")
    a("s_waitcnt vmcnt(0)")
    for k in range(nslot):
        rr = FB + k * NX * 4
        for p in range(1, NX):
            for i in range(4):
                a(f"v_add_f32 v{rr+i}, v{rr+i}, v{rr+4*p+i}")
        a(f"v_lshlrev_b32 v{acc+k}, 16, v{acc+k}")
        if not P.get("NOROUND"):
            a(f"v_cvt_pk_bf16_f32 v8, v{rr}, v{rr+1}")
            a(f"v_cvt_pk_bf16_f32 v9, v{rr+2}, v{rr+3}")
            a(f"v_lshlrev_b32 v{rr}, 16, v8")
            a(f"v_and_b32 v{rr+1}, 0xffff0000, v8")
            a(f"v_lshlrev_b32 v{rr+2}, 16, v9")
            a(f"v_and_b32 v{rr+3}, 0xffff0000, v9")
        for i in range(4):
            if k == 0:
                a(f"v_mul_f32 v{acc+8+i}, v{rr+i}, v{acc+k}")
            else:
                a(f"v_fmac_f32 v{acc+8+i}, v{rr+i}, v{acc+k}")
    SS = acc + 8
    for sh in (8, 4, 2, 1):
        a("s_nop 1")
        for i in range(4):
            a(f"v_add_f32_dpp v{SS+i}, v{SS+i}, v{SS+i} row_ror:{sh} row_mask:0xf bank_mask:0xf")
    a("v_lshlrev_b32 v7, 4, v5")
    a("s_lshl_b32 s36, s34, 6")
    a("v_add_u32 v7, s36, v7")
    a("v_cmp_eq_u32 vcc, 0, v4")
    a("s_and_saveexec_b64 s[48:49], vcc")
    a(f"ds_write_b128 v7, v[{SS}:{SS+3}] offset:{SC}")
    a("s_mov_b64 exec, s[48:49]")
    a("s_waitcnt lgkmcnt(0)")
    a("s_barrier")
    a("s_branch L_notlast")
    a.label("L_fin_v")
    a("s_lshl_b32 s36, s32, 8")
    a("s_add_u32 s12, s60, s36")
    a("s_addc_u32 s13, s61, 0")
    a("s_and_b32 s13, s13, 0xffff")
    a("s_mov_b32 s14, 256")
    a("s_mov_b32 s15, 0x20000")
    a("s_waitcnt vmcnt(0)")
    for k in range(nslot):
        rr = FB + k * NX * 4
        for p in range(1, NX):
            for i in range(4):
                a(f"v_add_f32 v{rr+i}, v{rr+i}, v{rr+4*p+i}")
        if not P.get("NOROUND"):
            a(f"v_cvt_pk_bf16_f32 v8, v{rr}, v{rr+1}")
            a(f"v_cvt_pk_bf16_f32 v9, v{rr+2}, v{rr+3}")
            a(f"v_lshlrev_b32 v{rr}, 16, v8")
            a(f"v_and_b32 v{rr+1}, 0xffff0000, v8")
            a(f"v_lshlrev_b32 v{rr+2}, 16, v9")
            a(f"v_and_b32 v{rr+3}, 0xffff0000, v9")
    a("v_lshlrev_b32 v7, 2, v4")
    a("v_lshlrev_b32 v10, 4, v5")
    a("s_barrier")
    for w in range(WT):
        a(f"ds_read_b32 v{acc+w}, v7 offset:{SC+w*64}")
    for i in range(1, 4):
        a(f"v_add_u32 v{10+i}, {4*i}, v10")
    for w in range(1, WT):
        a(f"s_waitcnt lgkmcnt({WT-1-w})")
        a(f"v_add_f32 v{acc}, v{acc}, v{acc+w}")
    a(f"v_cvt_pk_bf16_f32 v8, v{acc}, v{acc}")
    a("v_lshlrev_b32 v8, 16, v8")
    a("v_mul_f32 v8, 0x3db504f3, v8")
    a("v_cvt_pk_bf16_f32 v8, v8, v8")
    a("v_lshlrev_b32 v8, 16, v8")
    a("v_mov_b32 v9, v8")
    for sh in (8, 4, 2, 1):
        a("s_nop 1")
        a(f"v_max_f32_dpp v9, v9, v9 row_ror:{sh} row_mask:0xf bank_mask:0xf")
    a("v_sub_f32 v8, v8, v9")
    a("v_mul_f32 v8, 0x3fb8aa3b, v8")
    a("v_exp_f32 v8, v8")
    a("s_nop 0")
    a("v_mov_b32 v9, v8")
    for sh in (8, 4, 2, 1):
        a("s_nop 1")
        a(f"v_add_f32_dpp v9, v9, v9 row_ror:{sh} row_mask:0xf bank_mask:0xf")
    a("v_rcp_f32 v9, v9")
    a("s_nop 0")
    a("v_mul_f32 v8, v8, v9")
    a("v_cvt_pk_bf16_f32 v8, v8, v8")
    a("v_lshlrev_b32 v8, 16, v8")
    for i in range(4):
        a(f"ds_bpermute_b32 v{10+i}, v{10+i}, v8")
    a("v_xor_b32 v6, 16, v0")
    a("v_lshlrev_b32 v6, 2, v6")
    a("v_xor_b32 v7, 32, v0")
    a("v_lshlrev_b32 v7, 2, v7")
    a("s_waitcnt lgkmcnt(0)")
    for k in range(nslot):
        rr = FB + k * NX * 4
        a(f"v_mul_f32 v{acc+k}, v10, v{rr}")
        a(f"v_fmac_f32 v{acc+k}, v11, v{rr+1}")
        a(f"v_fmac_f32 v{acc+k}, v12, v{rr+2}")
        a(f"v_fmac_f32 v{acc+k}, v13, v{rr+3}")
    for k in range(nslot):
        a(f"ds_bpermute_b32 v{acc+8+k}, v6, v{acc+k}")
    a("s_waitcnt lgkmcnt(0)")
    for k in range(nslot):
        a(f"v_add_f32 v{acc+k}, v{acc+k}, v{acc+8+k}")
    for k in range(nslot):
        a(f"ds_bpermute_b32 v{acc+8+k}, v7, v{acc+k}")
    a("s_waitcnt lgkmcnt(0)")
    for k in range(nslot):
        a(f"v_add_f32 v{acc+k}, v{acc+k}, v{acc+8+k}")
        if P.get("PERT"):
            a(f"v_mul_f32 v{acc+k}, {P['PERT']}, v{acc+k}")
        if P.get("PERTA"):
            a(f"v_add_f32 v{acc+k}, {P['PERTA']}, v{acc+k}")
        a(f"v_cvt_pk_bf16_f32 v{acc+k}, v{acc+k}, v{acc+k}")
    a("v_lshlrev_b32 v6, 4, v4")
    a("s_lshl_b32 s36, s34, 1")
    a("v_cmp_gt_u32 vcc, 16, v0")
    a("s_and_saveexec_b64 s[48:49], vcc")
    for k in range(nslot):
        a(f"buffer_store_short v{acc+k}, v6, s[12:15], s36 offen offset:{k*WT*2}")
    a("s_mov_b64 exec, s[48:49]")
    a.label("L_notlast")
    if STAMP:
        a(f"s_cmp_lg_u32 s3, {WPB-1}")
        a("s_cbranch_scc1 L_done")
        a("s_waitcnt vmcnt(0)")
        a("s_memrealtime s[46:47]")
        a("s_getreg_b32 s37, hwreg(HW_REG_XCC_ID)")
        a("s_waitcnt lgkmcnt(0)")
        a("s_lshl_b32 s36, s2, 5")
        a("s_add_u32 s36, s36, 0x10000000")
        a("s_add_u32 s8, s28, s36")
        a("s_addc_u32 s9, s29, 0")
        a("s_and_b32 s9, s9, 0xffff")
        a("s_mov_b32 s10, 32")
        a("s_mov_b32 s11, 0x20000")
        a("v_mov_b32 v4, s40")
        a("v_mov_b32 v5, s42")
        a("v_mov_b32 v6, s44")
        a("v_mov_b32 v7, s46")
        a("v_mov_b32 v8, s37")
        a("v_mov_b32 v9, 0")
        a("s_mov_b64 exec, 1")
        a("buffer_store_dwordx4 v[4:7], v9, s[8:11], 0 offen")
        a("buffer_store_dword v8, v9, s[8:11], 0 offen offset:16")
    a.label("L_done")
    a("s_endpgm")
    lds = WPB * 8192 + 32
    hdr = HDR + f"; @launch grid=({NWG},1,1) block=({WPB*64},1,1) lds={lds}\n"
    return hdr + '.amdgcn_target "amdgcn-amd-amdhsa--gfx950"\n.text\n' + a.text() + desc(KN, nv, 70)


DEF = dict(WPB=16, NX=8, NB=2, S=32, KFLAGS="nt")

if __name__ == "__main__":
    P = dict(DEF)
    out = sys.argv[1]
    for kv in sys.argv[2:]:
        k, v = kv.split("=")
        try:
            v = int(v)
        except ValueError:
            v = v.replace("+", " ")
        P[k] = v
    open(out, "w").write(gen(P))
    print("wrote", out, P)
```

```python
import sys, re
from gen2 import A, desc, HDR, KN, ROW_E


WS_CTL = 0
C_POOL = 0
C_KARR = 512
C_P = 1024
C_KS = 1536
C_O = 2048
L_KC = 16
L_SK = 32
L_OL = 128


def gen(P):
    a = A()
    WPB, NX, NB, S = P["WPB"], P["NX"], P["NB"], P["S"]
    kfl = " " + P["KFLAGS"] if P["KFLAGS"] else ""
    WT = WPB // 2
    NR = 65536 // NX
    TW = NR // 32
    NP = TW - S
    NPOOL = NX * S
    NWG = 32 * NX
    loglx = NX.bit_length() - 1
    L = 9
    vOffK, vOffE = 1, 2
    base = 4
    buf = [base + 36 * b for b in range(NB)]
    tmp = base + 36 * NB
    acc = tmp + 8
    nv = acc + 32
    vT, vT1, vCnt, vAuxOff = nv, nv + 1, nv + 2, nv + 3
    assert vT % 2 == 0
    vOne64 = nv + 4
    AUX = nv + 6
    nv += 10
    STAMP = P.get("STAMP", 0)
    assert NX == 8
    assert NP >= (NB - 1) * WT + WT

    a.raw(f".globl {KN}\n.p2align 8\n.type {KN},@function\n{KN}:")
    a(f"s_cmp_ge_u32 s2, {NWG}")
    a("s_cbranch_scc1 L_done")
    a("s_load_dwordx4 s[4:7], s[0:1], 8")
    a("s_load_dwordx4 s[24:27], s[0:1], 24")
    if STAMP:
        a("s_memrealtime s[40:41]")
    a("v_lshrrev_b32 v3, 6, v0")
    a("v_and_b32 v0, 63, v0")
    a("v_readfirstlane_b32 s3, v3")
    a("v_lshrrev_b32 v3, 4, v0")
    a("v_and_b32 v2, 15, v0")
    a("v_lshlrev_b32 v1, 11, v3")
    a("v_lshl_add_u32 v1, v2, 4, v1")
    a("v_lshlrev_b32 v2, 17, v2")
    a("v_lshl_add_u32 v2, v3, 4, v2")
    a(f"s_and_b32 s30, s2, {NX-1}")
    a(f"s_lshr_b32 s32, s2, {loglx}")
    a(f"s_lshr_b32 s33, s3, {WT.bit_length()-1}")
    a(f"s_and_b32 s34, s3, {WT-1}")
    a("s_lshl_b32 s35, s32, 24")
    a(f"s_mul_i32 s18, s30, {TW}")
    a("s_mov_b32 s10, 0x1000000")
    a("s_mov_b32 s11, 0x20000")
    a("s_mov_b32 s14, 0x200000")
    a("s_mov_b32 s15, 0x20000")
    a("s_add_u32 s19, s18, s34")
    a("s_lshl_b32 s16, s19, 13")
    a("s_lshl_b32 s17, s19, 6")
    a("s_cmp_eq_u32 s33, 0")
    a("s_waitcnt lgkmcnt(0)")
    a("s_cselect_b32 s8, s4, s6")
    a("s_cselect_b32 s9, s5, s7")
    a("s_cselect_b32 s12, s24, s26")
    a("s_cselect_b32 s13, s25, s27")
    a("s_add_u32 s8, s8, s35")
    a("s_addc_u32 s9, s9, 0")
    a("s_and_b32 s9, s9, 0xffff")
    a("s_and_b32 s13, s13, 0xffff")

    def loads(b):
        r = buf[b]
        for j in range(8):
            a(f"buffer_load_dwordx4 v[{r+4*j}:{r+4*j+3}], v{vOffK}, s[8:11], s16 offen offset:{j*256}{kfl}")
        a(f"buffer_load_dwordx4 v[{r+32}:{r+35}], v{vOffE}, s[12:15], s17 offen")

    def compute(b):
        r = buf[b]
        def perm(dd):
            i, h = dd >> 1, dd & 1
            t = tmp + 4 * (dd & 1)
            for p in range(4):
                a(f"v_perm_b32 v{t+p}, v{r+4*(2*p+1)+i}, v{r+4*(2*p)+i}, s{20+h}")
        def mfma(dd):
            t = tmp + 4 * (dd & 1)
            a(f"v_mfma_f32_16x16x32_bf16 v[{acc+4*dd}:{acc+4*dd+3}], v[{r+32}:{r+35}], v[{t}:{t+3}], v[{acc+4*dd}:{acc+4*dd+3}]")
        perm(0); perm(1)
        for dd in range(7):
            mfma(dd)
            if dd + 2 < 8:
                perm(dd + 2)
        a("s_nop 1")
        mfma(7)

    for b in range(NB - 1):
        loads(b)
        if b + 1 < NB - 1:
            a(f"s_add_u32 s16, s16, {WT*8192}")
            a(f"s_add_u32 s17, s17, {WT*64}")
    a("s_load_dwordx2 s[56:57], s[0:1], 0")
    a("s_load_dwordx4 s[60:63], s[0:1], 40")
    a("s_load_dwordx2 s[28:29], s[0:1], 56")
    a("s_mov_b32 s20, 0x05040100")
    a("s_mov_b32 s21, 0x07060302")
    a("s_cmp_lg_u32 s3, 0")
    a("s_cbranch_scc1 L_noinit")
    a(f"v_lshlrev_b32 v3, 4, v0")
    for i in range(4):
        a(f"v_mov_b32 v{tmp+i}, 0")
    a(f"ds_write_b128 v3, v[{tmp}:{tmp+3}]")
    a(f"v_mov_b32 v{tmp}, {(NB-1)*WT}")
    a(f"v_mov_b32 v{tmp+2}, {(NB-1)*WT}")
    a("v_mov_b32 v3, 0")
    a(f"ds_write_b128 v3, v[{tmp}:{tmp+3}]")
    a.label("L_noinit")
    a(f"s_lshl_b32 s36, s33, 3")
    a(f"v_mov_b32 v{vCnt}, s36")
    a(f"v_mov_b32 v{vOne64}, 1")
    a(f"v_mov_b32 v{vOne64+1}, 0")
    a(f"v_and_b32 v{vAuxOff}, 15, v0")
    a(f"v_lshrrev_b32 v3, 4, v0")
    a("s_cmp_eq_u32 s33, 0")
    a("s_cselect_b64 vcc, -1, 0")
    a(f"v_cndmask_b32 v{vAuxOff}, v3, v{vAuxOff}, vcc")
    a(f"v_lshlrev_b32 v{vAuxOff}, 4, v{vAuxOff}")
    for i in range(32):
        a(f"v_mov_b32 v{acc+i}, 0")
    a("s_waitcnt lgkmcnt(0)")
    a("s_lshl_b32 s36, s32, 13")
    a("s_add_u32 s54, s28, s36")
    a("s_addc_u32 s55, s29, 0")
    a("s_lshl_b32 s36, s33, 8")
    a("s_add_u32 s52, s54, s36")
    a("s_addc_u32 s53, s55, 0")
    a("s_lshl_b32 s36, s32, 8")
    a("s_add_u32 s36, s56, s36")
    a("s_addc_u32 s37, s57, 0")
    a(f"s_add_u32 s38, s54, {C_P}")
    a("s_addc_u32 s39, s55, 0")
    a("s_cmp_eq_u32 s33, 0")
    a("s_cselect_b32 s64, s36, s38")
    a("s_cselect_b32 s65, s37, s39")
    a("s_cselect_b32 s66, 256, 64")
    a("s_and_b32 s65, s65, 0xffff")
    a("s_mov_b32 s67, 0x20000")
    a("s_barrier")
    a("s_cmp_lg_u32 s3, 0")
    a("s_cbranch_scc1 L_loop0")
    a("s_lshl_b32 s36, s32, 3")
    a("s_add_u32 s50, s62, s36")
    a("s_addc_u32 s51, s63, 0")
    a("s_mov_b32 s36, 1")
    a("s_atomic_or s36, s[50:51], 0x0 glc")
    a("s_waitcnt lgkmcnt(0)")
    a("s_and_b32 s37, s36, 1")
    a("s_cbranch_scc1 L_poll")
    a(f"v_mov_b32 v{tmp}, 0")
    a(f"v_lshlrev_b32 v{tmp+1}, 8, v0")
    for i in range(4):
        a(f"v_mov_b32 v{tmp+4+i}, -1")
    a(f"v_lshlrev_b32 v{tmp+2}, 4, v0")
    a(f"v_lshlrev_b32 v{tmp+3}, 2, v0")
    a(f"v_add_u32 v{vT}, {C_O}, v{tmp+2}")
    for i in range(4):
        a(f"global_store_dwordx4 v{vT}, v[{tmp+4}:{tmp+7}], s[54:55] offset:{i*1024} sc1")
    a("s_mov_b64 exec, 0xffff")
    a(f"global_store_dword v{tmp+3}, v{tmp+4}, s[54:55] offset:{C_P} sc1")
    a("s_mov_b64 exec, 15")
    a(f"global_store_dword v{tmp+1}, v{tmp}, s[54:55] sc1")
    a("s_mov_b64 exec, -1")
    a("s_waitcnt vmcnt(0)")
    a("s_mov_b32 s36, 2")
    a("s_atomic_or s36, s[50:51], 0x0 glc")
    a("s_waitcnt lgkmcnt(0)")
    a("s_branch L_setready")
    a.label("L_poll")
    a("s_and_b32 s37, s36, 2")
    a("s_cbranch_scc1 L_setready")
    a("s_sleep 4")
    a("s_mov_b32 s36, 0")
    a("s_atomic_or s36, s[50:51], 0x0 glc")
    a("s_waitcnt lgkmcnt(0)")
    a("s_branch L_poll")
    a.label("L_setready")
    a(f"v_mov_b32 v{tmp}, 0")
    a(f"v_mov_b32 v{tmp+2}, 0")
    a(f"v_mov_b32 v{tmp+3}, 1")
    a("s_mov_b64 exec, 1")
    a(f"ds_add_u64 v{tmp}, v[{tmp+2}:{tmp+3}]")
    a(f"ds_add_u64 v{tmp}, v[{tmp+2}:{tmp+3}] offset:8")
    a("s_mov_b64 exec, -1")
    a.label("L_loop0")

    def grab_lds():
        a("s_mov_b64 exec, 1")
        a(f"ds_add_rtn_u64 v[{vT}:{vT1}], v{vCnt}, v[{vOne64}:{vOne64+1}]")
        a("s_mov_b64 exec, -1")

    def grab_pool():
        a("s_mov_b32 s23, 1")
        a("s_atomic_add s23, s[52:53], 0x0 glc")

    for b in range(NB):
        nb = (b + NB - 1) % NB
        a.label(f"L_p1_{b}")
        grab_lds()
        a("s_waitcnt lgkmcnt(0)")
        a(f"v_readfirstlane_b32 s19, v{vT}")
        a(f"v_readfirstlane_b32 s22, v{vT1}")
        a("s_nop 2")
        a("s_add_u32 s36, s18, s19")
        a("s_lshl_b32 s16, s36, 13")
        a("s_lshl_b32 s17, s36, 6")
        a(f"s_cmp_ge_u32 s19, {NP-WT}")
        a(f"s_cbranch_scc1 L_sw_{b}")
        loads(nb)
        a(f"s_waitcnt vmcnt({L*(NB-1)})")
        compute(b)
    a("s_branch L_p1_0")
    for b in range(NB):
        a.label(f"L_sw_{b}")
        a("s_cmp_lg_u32 s22, 0")
        a(f"s_cbranch_scc1 L_swok_{b}")
        a.label(f"L_swspin_{b}")
        a("s_sleep 4")
        a(f"ds_read_b64 v[{vT}:{vT1}], v{vCnt}")
        a("s_waitcnt lgkmcnt(0)")
        a(f"v_readfirstlane_b32 s22, v{vT1}")
        a("s_nop 2")
        a("s_cmp_eq_u32 s22, 0")
        a(f"s_cbranch_scc1 L_swspin_{b}")
        a.label(f"L_swok_{b}")
        grab_pool()
        a(f"s_branch L_p2m_{b}")
    for b in range(NB):
        nb = (b + NB - 1) % NB
        a.label(f"L_p2_{b}")
        a("s_waitcnt lgkmcnt(0)")
        a(f"s_cmp_ge_u32 s23, {NPOOL}")
        a(f"s_cbranch_scc1 L_dr_{b}")
        a(f"s_and_b32 s36, s23, {NX-1}")
        a(f"s_mul_i32 s36, s36, {TW}")
        a(f"s_lshr_b32 s37, s23, {loglx}")
        a("s_add_u32 s36, s36, s37")
        a(f"s_add_u32 s36, s36, {NP}")
        a("s_lshl_b32 s16, s36, 13")
        a("s_lshl_b32 s17, s36, 6")
        grab_pool()
        a.label(f"L_p2m_{b}")
        loads(nb)
        a(f"s_waitcnt vmcnt({L*(NB-1)})")
        compute(b)
    a("s_branch L_p2_0")
    for b in range(NB):
        a.label(f"L_dr_{b}")
        a(f"buffer_load_dwordx4 v[{AUX}:{AUX+3}], v{vAuxOff}, s[64:67], 0 offen sc1")
        for k in range(NB - 1):
            a(f"s_waitcnt vmcnt({L*(NB-2-k)+1})")
            compute((b + k) % NB)
        if b + 1 < NB:
            a("s_branch L_loopdone")
    a.label("L_loopdone")
    if STAMP:
        a("s_memrealtime s[42:43]")
        a("s_waitcnt lgkmcnt(0)")
        a("v_mov_b32 v4, s42")
        a("v_mov_b32 v5, 96")
        a("s_mov_b64 exec, 1")
        a("ds_max_u32 v5, v4")
        a("s_mov_b64 exec, -1")
    a("v_and_b32 v4, 15, v0")
    a("v_lshrrev_b32 v5, 4, v0")
    a("s_cmp_lg_u32 s33, 0")
    a("s_cbranch_scc1 L_vend")
    a("s_waitcnt vmcnt(0)")
    Q = 8
    for j in range(4):
        a(f"v_lshlrev_b32 v{Q+2*j}, 16, v{AUX+j}")
        a(f"v_and_b32 v{Q+2*j+1}, 0xffff0000, v{AUX+j}")
    T = 16
    for i in range(4):
        a(f"v_mul_f32 v{T+i}, v{Q}, v{acc+i}")
    for dd in range(1, 8):
        for i in range(4):
            a(f"v_fmac_f32 v{T+i}, v{Q+dd}, v{acc+4*dd+i}")
    for sh in (8, 4, 2, 1):
        a("s_nop 1")
        for i in range(4):
            a(f"v_add_f32_dpp v{T+i}, v{T+i}, v{T+i} row_ror:{sh} row_mask:0xf bank_mask:0xf")
    a("v_lshlrev_b32 v6, 4, v5")
    a("v_cmp_eq_u32 vcc, 0, v4")
    a("s_and_saveexec_b64 s[48:49], vcc")
    for i in range(4):
        a(f"ds_add_f32 v6, v{T+i} offset:{L_SK + 4*i}")
    a("s_mov_b64 exec, 1")
    a(f"v_mov_b32 v6, {L_KC}")
    a("v_mov_b32 v7, 1")
    a("ds_add_rtn_u32 v7, v6, v7")
    a("s_mov_b64 exec, -1")
    a("s_waitcnt lgkmcnt(0)")
    a("v_readfirstlane_b32 s36, v7")
    a("s_nop 3")
    a(f"s_cmp_lg_u32 s36, {WT-1}")
    a("s_cbranch_scc1 L_fin")
    a("v_lshlrev_b32 v6, 2, v4")
    a(f"ds_read_b32 v7, v6 offset:{L_SK}")
    a("s_lshl_b32 s36, s30, 6")
    a("v_add_u32 v6, s36, v6")
    a("s_waitcnt lgkmcnt(0)")
    a("s_mov_b64 exec, 0xffff")
    a(f"global_store_dword v6, v7, s[54:55] offset:{C_KS} sc1")
    a("s_mov_b64 exec, -1")
    a("s_waitcnt vmcnt(0)")
    a("s_mov_b32 s36, 1")
    a(f"s_atomic_add s36, s[54:55], {C_KARR} glc")
    a("s_waitcnt lgkmcnt(0)")
    a(f"s_cmp_lg_u32 s36, {NX-1}")
    a("s_cbranch_scc1 L_fin")
    a("v_lshlrev_b32 v6, 2, v0")
    a(f"global_load_dword v8, v6, s[54:55] offset:{C_KS} sc1")
    a(f"global_load_dword v9, v6, s[54:55] offset:{C_KS+256} sc1")
    a("v_xor_b32 v6, 16, v0")
    a("v_lshlrev_b32 v6, 2, v6")
    a("v_xor_b32 v7, 32, v0")
    a("v_lshlrev_b32 v7, 2, v7")
    a("s_waitcnt vmcnt(0)")
    a("v_add_f32 v8, v8, v9")
    a("ds_bpermute_b32 v9, v6, v8")
    a("s_waitcnt lgkmcnt(0)")
    a("v_add_f32 v8, v8, v9")
    a("ds_bpermute_b32 v9, v7, v8")
    a("s_waitcnt lgkmcnt(0)")
    a("v_add_f32 v8, v8, v9")
    a("v_cvt_pk_bf16_f32 v8, v8, v8")
    a("v_lshlrev_b32 v8, 16, v8")
    a("v_mul_f32 v8, 0x3db504f3, v8")
    a("v_cvt_pk_bf16_f32 v8, v8, v8")
    a("v_lshlrev_b32 v8, 16, v8")
    a("v_mov_b32 v9, v8")
    for sh in (8, 4, 2, 1):
        a("s_nop 1")
        a(f"v_max_f32_dpp v9, v9, v9 row_ror:{sh} row_mask:0xf bank_mask:0xf")
    a("v_sub_f32 v8, v8, v9")
    a("v_mul_f32 v8, 0x3fb8aa3b, v8")
    a("v_exp_f32 v8, v8")
    a("s_nop 0")
    a("v_mov_b32 v9, v8")
    for sh in (8, 4, 2, 1):
        a("s_nop 1")
        a(f"v_add_f32_dpp v9, v9, v9 row_ror:{sh} row_mask:0xf bank_mask:0xf")
    a("v_rcp_f32 v9, v9")
    a("s_nop 0")
    a("v_mul_f32 v8, v8, v9")
    a("v_cvt_pk_bf16_f32 v8, v8, v8")
    a("v_lshlrev_b32 v8, 16, v8")
    a("v_lshlrev_b32 v6, 2, v4")
    a("s_mov_b64 exec, 0xffff")
    a(f"global_store_dword v6, v8, s[54:55] offset:{C_P} sc1")
    a("s_branch L_fin")
    a.label("L_vend")
    a(f"s_mov_b32 s36, {P['SPIN']}")
    a.label("L_pchk")
    a("s_waitcnt vmcnt(0)")
    a(f"v_cmp_eq_u32 vcc, -1, v{AUX}")
    a(f"v_cmp_eq_u32 s[48:49], -1, v{AUX+1}")
    a("s_or_b64 vcc, vcc, s[48:49]")
    a(f"v_cmp_eq_u32 s[48:49], -1, v{AUX+2}")
    a("s_or_b64 vcc, vcc, s[48:49]")
    a(f"v_cmp_eq_u32 s[48:49], -1, v{AUX+3}")
    a("s_or_b64 vcc, vcc, s[48:49]")
    a("s_cbranch_vccz L_pok")
    a("s_sub_u32 s36, s36, 1")
    a("s_cbranch_scc1 L_pok")
    a("s_sleep 8")
    a(f"buffer_load_dwordx4 v[{AUX}:{AUX+3}], v{vAuxOff}, s[64:67], 0 offen sc1")
    a("s_branch L_pchk")
    a.label("L_pok")
    if STAMP:
        a("s_memrealtime s[42:43]")
        a("s_waitcnt lgkmcnt(0)")
        a("v_mov_b32 v6, s42")
        a("v_mov_b32 v7, 100")
        a("s_mov_b64 exec, 1")
        a("ds_max_u32 v7, v6")
        a("s_mov_b64 exec, -1")
    O = 8
    for dd in range(8):
        a(f"v_mul_f32 v{O+dd}, v{AUX}, v{acc+4*dd}")
    for i in range(1, 4):
        for dd in range(8):
            a(f"v_fmac_f32 v{O+dd}, v{AUX+i}, v{acc+4*dd+i}")
    a("s_nop 1")
    a(f"v_permlane32_swap_b32 v{O+0}, v{O+4}")
    a(f"v_permlane32_swap_b32 v{O+2}, v{O+6}")
    a(f"v_permlane32_swap_b32 v{O+1}, v{O+5}")
    a(f"v_permlane32_swap_b32 v{O+3}, v{O+7}")
    a("s_nop 1")
    a(f"v_add_f32 v{O+0}, v{O+0}, v{O+4}")
    a(f"v_add_f32 v{O+2}, v{O+2}, v{O+6}")
    a(f"v_add_f32 v{O+1}, v{O+1}, v{O+5}")
    a(f"v_add_f32 v{O+3}, v{O+3}, v{O+7}")
    a("s_nop 1")
    a(f"v_permlane16_swap_b32 v{O+0}, v{O+2}")
    a(f"v_permlane16_swap_b32 v{O+1}, v{O+3}")
    a("s_nop 1")
    a(f"v_add_f32 v{O+0}, v{O+0}, v{O+2}")
    a(f"v_add_f32 v{O+1}, v{O+1}, v{O+3}")
    a("v_lshlrev_b32 v6, 3, v0")
    a("s_lshl_b32 s36, s34, 9")
    a("v_add_u32 v7, s36, v6")
    a(f"ds_write_b64 v7, v[{O}:{O+1}] offset:{L_OL}")
    a("s_waitcnt lgkmcnt(0)")
    a("s_barrier")
    if STAMP:
        a("s_memrealtime s[44:45]")
    a(f"s_cmp_lg_u32 s3, {WT}")
    a("s_cbranch_scc1 L_fin")
    for w in range(WT):
        a(f"ds_read_b64 v[{10+2*w}:{11+2*w}], v6 offset:{L_OL + 512*w}")
    for w in range(WT):
        a(f"s_waitcnt lgkmcnt({WT-1-w})")
        if w == 0:
            a("v_mov_b32 v8, v10")
            a("v_mov_b32 v9, v11")
        else:
            a(f"v_add_f32 v8, v8, v{10+2*w}")
            a(f"v_add_f32 v9, v9, v{11+2*w}")
    a("s_cmp_eq_u32 s30, 0")
    a("s_cbranch_scc1 L_final")
    a("v_mov_b32 v10, 0x7fc00000")
    a("v_cmp_eq_u32 vcc, -1, v8")
    a("v_cmp_eq_u32 s[48:49], -1, v9")
    a("s_lshl_b32 s36, s30, 9")
    a("v_add_u32 v6, s36, v6")
    a("v_cndmask_b32 v8, v8, v10, vcc")
    a("v_cndmask_b32 v9, v9, v10, s[48:49]")
    a(f"global_store_dwordx2 v6, v[8:9], s[54:55] offset:{C_O} sc1")
    a("s_branch L_fin")
    a.label("L_final")
    a(f"v_add_u32 v6, {C_O}, v6")
    a(f"s_mov_b32 s36, {P['SPIN']}")
    a.label("L_opoll")
    for x in range(1, NX):
        a(f"global_load_dwordx2 v[{10+2*x}:{11+2*x}], v6, s[54:55] offset:{x*512} sc1")
    a("s_waitcnt vmcnt(0)")
    a(f"v_cmp_eq_u32 vcc, -1, v12")
    for r in range(13, 10 + 2 * NX):
        a(f"v_cmp_eq_u32 s[48:49], -1, v{r}")
        a("s_or_b64 vcc, vcc, s[48:49]")
    a("s_cbranch_vccz L_ook")
    a("s_sub_u32 s36, s36, 1")
    a("s_cbranch_scc1 L_ook")
    a("s_sleep 2")
    a("s_branch L_opoll")
    a.label("L_ook")
    for x in range(1, NX):
        a(f"v_add_f32 v8, v8, v{10+2*x}")
        a(f"v_add_f32 v9, v9, v{11+2*x}")
    a("v_cvt_pk_bf16_f32 v8, v8, v9")
    a("s_lshl_b32 s36, s32, 8")
    a("s_add_u32 s12, s60, s36")
    a("s_addc_u32 s13, s61, 0")
    a("s_and_b32 s13, s13, 0xffff")
    a("s_mov_b32 s14, 256")
    a("s_mov_b32 s15, 0x20000")
    a("v_lshlrev_b32 v6, 4, v4")
    a("v_lshl_add_u32 v6, v5, 2, v6")
    a("buffer_store_dword v8, v6, s[12:15], 0 offen")
    a.label("L_fin")
    if STAMP:
        a(f"s_cmp_lg_u32 s3, {WT}")
        a("s_cbranch_scc1 L_done")
        a("s_waitcnt vmcnt(0)")
        a("s_memrealtime s[46:47]")
        a("s_getreg_b32 s37, hwreg(HW_REG_XCC_ID)")
        a("s_waitcnt lgkmcnt(0)")
        a("s_lshl_b32 s36, s2, 5")
        a("s_add_u32 s36, s36, 0x10000000")
        a("s_add_u32 s8, s28, s36")
        a("s_addc_u32 s9, s29, 0")
        a("s_and_b32 s9, s9, 0xffff")
        a("s_mov_b32 s10, 32")
        a("s_mov_b32 s11, 0x20000")
        a("v_mov_b32 v9, 96")
        a("ds_read_b64 v[10:11], v9")
        a("v_mov_b32 v4, s40")
        a("v_mov_b32 v6, s44")
        a("v_mov_b32 v7, s46")
        a("v_mov_b32 v8, s37")
        a("s_waitcnt lgkmcnt(0)")
        a("v_mov_b32 v5, v10")
        a("v_mov_b32 v9, v11")
        a("buffer_store_dword v9, v12, s[8:11], 0 offen offset:20") if False else None
        a("v_mov_b32 v12, 0")
        a("s_mov_b64 exec, 1")
        a("buffer_store_dwordx4 v[4:7], v12, s[8:11], 0 offen")
        a("buffer_store_dwordx2 v[8:9], v12, s[8:11], 0 offen offset:16")
    a.label("L_done")
    a("s_endpgm")
    lds = P["LDS"]
    hdr = HDR + f"; @launch grid=({NWG},1,1) block=({WPB*64},1,1) lds={lds}\n"
    return hdr + '.amdgcn_target "amdgcn-amd-amdhsa--gfx950"\n.text\n' + a.text() + desc(KN, nv, 80)


DEF = dict(WPB=16, NX=8, NB=2, S=32, KFLAGS="nt", SPIN=100000, LDS=98304)

if __name__ == "__main__":
    P = dict(DEF)
    out = sys.argv[1]
    for kv in sys.argv[2:]:
        k, v = kv.split("=")
        try:
            v = int(v)
        except ValueError:
            v = v.replace("+", " ")
        P[k] = v
    open(out, "w").write(gen(P))
    print("wrote", out, P)
```

```python
import sys, re
from gen2 import A, desc, HDR, KN, ROW_E


WS_CTL = 0
C_POOL = 0
C_KARR = 512
C_P = 1024
C_KS = 1536
C_O = 2048
L_KC = 16
L_SK = 32
L_OL = 128


def gen(P):
    a = A()
    WPB, NX, NB, S = P["WPB"], P["NX"], P["NB"], P["S"]
    kfl = " " + P["KFLAGS"] if P["KFLAGS"] else ""
    WT = WPB // 2
    NR = 65536 // NX
    TW = NR // 32
    NP = TW - S
    NPOOL = NX * S
    NWG = 32 * NX
    loglx = NX.bit_length() - 1
    L = 9
    vOffK, vOffE = 1, 2
    base = 4
    buf = [base + 36 * b for b in range(NB)]
    tmp = base + 36 * NB
    acc = tmp + 8
    nv = acc + 32
    vT, vT1, vCnt, vAuxOff = nv, nv + 1, nv + 2, nv + 3
    assert vT % 2 == 0
    vOne64 = nv + 4
    AUX = nv + 6
    nv += 10
    STAMP = P.get("STAMP", 0)
    assert NX == 8
    assert NP >= (NB - 1) * WT + WT

    a.raw(f".globl {KN}\n.p2align 8\n.type {KN},@function\n{KN}:")
    a(f"s_cmp_ge_u32 s2, {NWG}")
    a("s_cbranch_scc1 L_done")
    a("s_load_dwordx4 s[4:7], s[0:1], 8")
    a("s_load_dwordx4 s[24:27], s[0:1], 24")
    if STAMP:
        a("s_memrealtime s[40:41]")
    a("v_lshrrev_b32 v3, 6, v0")
    a("v_and_b32 v0, 63, v0")
    a("v_readfirstlane_b32 s3, v3")
    a("v_lshrrev_b32 v3, 4, v0")
    a("v_and_b32 v2, 15, v0")
    a("v_lshlrev_b32 v1, 11, v3")
    a("v_lshl_add_u32 v1, v2, 4, v1")
    a("v_lshlrev_b32 v2, 17, v2")
    a("v_lshl_add_u32 v2, v3, 4, v2")
    a(f"s_and_b32 s30, s2, {NX-1}")
    a(f"s_lshr_b32 s32, s2, {loglx}")
    a(f"s_lshr_b32 s33, s3, {WT.bit_length()-1}")
    a(f"s_and_b32 s34, s3, {WT-1}")
    a("s_lshl_b32 s35, s32, 24")
    a(f"s_mul_i32 s18, s30, {TW}")
    a("s_mov_b32 s10, 0x1000000")
    a("s_mov_b32 s11, 0x20000")
    a("s_mov_b32 s14, 0x200000")
    a("s_mov_b32 s15, 0x20000")
    ROT = P.get("ROT", 0)
    if ROT:
        a(f"s_mul_i32 s31, s32, {ROT}")
        if P.get("ROTX"):
            a(f"s_mul_i32 s36, s30, {P['ROTX']}")
            a("s_add_u32 s31, s31, s36")
        for _ in range(2):
            a(f"s_cmp_ge_u32 s31, {NP}")
            a(f"s_cselect_b32 s36, {NP}, 0")
            a("s_sub_u32 s31, s31, s36")
        a("s_add_u32 s19, s31, s34")
        a(f"s_cmp_ge_u32 s19, {NP}")
        a(f"s_cselect_b32 s36, {NP}, 0")
        a("s_sub_u32 s19, s19, s36")
        a("s_add_u32 s19, s19, s18")
        assert NB == 2
    else:
        a("s_add_u32 s19, s18, s34")
    a("s_lshl_b32 s16, s19, 13")
    a("s_lshl_b32 s17, s19, 6")
    a("s_cmp_eq_u32 s33, 0")
    a("s_waitcnt lgkmcnt(0)")
    if STAMP == 2:
        a("s_memrealtime s[68:69]")
    a("s_cselect_b32 s8, s4, s6")
    a("s_cselect_b32 s9, s5, s7")
    a("s_cselect_b32 s12, s24, s26")
    a("s_cselect_b32 s13, s25, s27")
    a("s_add_u32 s8, s8, s35")
    a("s_addc_u32 s9, s9, 0")
    a("s_and_b32 s9, s9, 0xffff")
    a("s_and_b32 s13, s13, 0xffff")

    def loads(b):
        r = buf[b]
        for j in range(8):
            a(f"buffer_load_dwordx4 v[{r+4*j}:{r+4*j+3}], v{vOffK}, s[8:11], s16 offen offset:{j*256}{kfl}")
        a(f"buffer_load_dwordx4 v[{r+32}:{r+35}], v{vOffE}, s[12:15], s17 offen")

    def compute(b):
        r = buf[b]
        def perm(dd):
            i, h = dd >> 1, dd & 1
            t = tmp + 4 * (dd & 1)
            for p in range(4):
                a(f"v_perm_b32 v{t+p}, v{r+4*(2*p+1)+i}, v{r+4*(2*p)+i}, s{20+h}")
        def mfma(dd):
            t = tmp + 4 * (dd & 1)
            a(f"v_mfma_f32_16x16x32_bf16 v[{acc+4*dd}:{acc+4*dd+3}], v[{r+32}:{r+35}], v[{t}:{t+3}], v[{acc+4*dd}:{acc+4*dd+3}]")
        perm(0); perm(1)
        for dd in range(7):
            mfma(dd)
            if dd + 2 < 8:
                perm(dd + 2)
        a("s_nop 1")
        mfma(7)

    for b in range(NB - 1):
        loads(b)
        if b + 1 < NB - 1:
            a(f"s_add_u32 s16, s16, {WT*8192}")
            a(f"s_add_u32 s17, s17, {WT*64}")
    if STAMP == 3:
        a("s_memrealtime s[68:69]")
    a("s_load_dwordx2 s[56:57], s[0:1], 0")
    a("s_load_dwordx4 s[60:63], s[0:1], 40")
    a("s_load_dwordx2 s[28:29], s[0:1], 56")
    a("s_mov_b32 s20, 0x05040100")
    a("s_mov_b32 s21, 0x07060302")
    a("s_cmp_lg_u32 s3, 0")
    a("s_cbranch_scc1 L_noinit")
    a(f"v_lshlrev_b32 v3, 4, v0")
    for i in range(4):
        a(f"v_mov_b32 v{tmp+i}, 0")
    a(f"ds_write_b128 v3, v[{tmp}:{tmp+3}]")
    a(f"v_mov_b32 v{tmp}, {(NB-1)*WT}")
    a(f"v_mov_b32 v{tmp+2}, {(NB-1)*WT}")
    a("v_mov_b32 v3, 0")
    a(f"ds_write_b128 v3, v[{tmp}:{tmp+3}]")
    a.label("L_noinit")
    a(f"s_lshl_b32 s36, s33, 3")
    a(f"v_mov_b32 v{vCnt}, s36")
    a(f"v_mov_b32 v{vOne64}, 1")
    a(f"v_mov_b32 v{vOne64+1}, 0")
    a(f"v_and_b32 v{vAuxOff}, 15, v0")
    a(f"v_lshrrev_b32 v3, 4, v0")
    a("s_cmp_eq_u32 s33, 0")
    a("s_cselect_b64 vcc, -1, 0")
    a(f"v_cndmask_b32 v{vAuxOff}, v3, v{vAuxOff}, vcc")
    a(f"v_lshlrev_b32 v{vAuxOff}, 4, v{vAuxOff}")
    for i in range(32):
        a(f"v_mov_b32 v{acc+i}, 0")
    a("s_waitcnt lgkmcnt(0)")
    a("s_lshl_b32 s36, s32, 13")
    a("s_add_u32 s54, s28, s36")
    a("s_addc_u32 s55, s29, 0")
    a("s_lshl_b32 s36, s33, 8")
    a("s_add_u32 s52, s54, s36")
    a("s_addc_u32 s53, s55, 0")
    a("s_lshl_b32 s36, s32, 8")
    a("s_add_u32 s36, s56, s36")
    a("s_addc_u32 s37, s57, 0")
    a(f"s_add_u32 s38, s54, {C_P}")
    a("s_addc_u32 s39, s55, 0")
    a("s_cmp_eq_u32 s33, 0")
    a("s_cselect_b32 s64, s36, s38")
    a("s_cselect_b32 s65, s37, s39")
    a("s_cselect_b32 s66, 256, 64")
    a("s_and_b32 s65, s65, 0xffff")
    a("s_mov_b32 s67, 0x20000")
    a("s_barrier")
    a("s_cmp_lg_u32 s3, 0")
    a("s_cbranch_scc1 L_loop0")
    a("s_lshl_b32 s36, s32, 3")
    a("s_add_u32 s50, s62, s36")
    a("s_addc_u32 s51, s63, 0")
    a("s_mov_b32 s36, 1")
    a("s_atomic_or s36, s[50:51], 0x0 glc")
    a("s_waitcnt lgkmcnt(0)")
    a("s_and_b32 s37, s36, 1")
    a("s_cbranch_scc1 L_poll")
    a(f"v_mov_b32 v{tmp}, 0")
    a(f"v_lshlrev_b32 v{tmp+1}, 8, v0")
    for i in range(4):
        a(f"v_mov_b32 v{tmp+4+i}, -1")
    a(f"v_lshlrev_b32 v{tmp+2}, 4, v0")
    a(f"v_lshlrev_b32 v{tmp+3}, 2, v0")
    a(f"v_add_u32 v{vT}, {C_O}, v{tmp+2}")
    for i in range(4):
        a(f"global_store_dwordx4 v{vT}, v[{tmp+4}:{tmp+7}], s[54:55] offset:{i*1024} sc1")
    a("s_mov_b64 exec, 0xffff")
    a(f"global_store_dword v{tmp+3}, v{tmp+4}, s[54:55] offset:{C_P} sc1")
    a("s_mov_b64 exec, 15")
    a(f"global_store_dword v{tmp+1}, v{tmp}, s[54:55] sc1")
    a("s_mov_b64 exec, -1")
    a("s_waitcnt vmcnt(0)")
    a("s_mov_b32 s36, 2")
    a("s_atomic_or s36, s[50:51], 0x0 glc")
    a("s_waitcnt lgkmcnt(0)")
    a("s_branch L_setready")
    a.label("L_poll")
    a("s_and_b32 s37, s36, 2")
    a("s_cbranch_scc1 L_setready")
    a("s_sleep 4")
    a("s_mov_b32 s36, 0")
    a("s_atomic_or s36, s[50:51], 0x0 glc")
    a("s_waitcnt lgkmcnt(0)")
    a("s_branch L_poll")
    a.label("L_setready")
    a(f"v_mov_b32 v{tmp}, 0")
    a(f"v_mov_b32 v{tmp+2}, 0")
    a(f"v_mov_b32 v{tmp+3}, 1")
    a("s_mov_b64 exec, 1")
    a(f"ds_add_u64 v{tmp}, v[{tmp+2}:{tmp+3}]")
    a(f"ds_add_u64 v{tmp}, v[{tmp+2}:{tmp+3}] offset:8")
    a("s_mov_b64 exec, -1")
    a.label("L_loop0")
    if P.get("PREWARM"):
        a("s_cmp_lg_u32 s34, 1")
        a("s_cbranch_scc1 L_nowarm")
        a(f"v_lshlrev_b32 v{tmp}, 21, v0")
        a(f"v_add_u32 v{tmp}, {NP*8192 + 4096}, v{tmp}")
        a("s_mov_b64 exec, 0xff")
        a(f"buffer_load_dword v{tmp+1}, v{tmp}, s[8:11], 0 offen nt")
        a("s_mov_b64 exec, -1")
        a("s_waitcnt vmcnt(0)")
        a.label("L_nowarm")
    if STAMP == 3:
        a("s_memrealtime s[72:73]")
        a("s_waitcnt vmcnt(0)")
        a("s_memrealtime s[70:71]")
        a("s_waitcnt lgkmcnt(0)")
        a(f"s_mul_i32 s36, s2, {WPB}")
        a("s_add_u32 s36, s36, s3")
        a("s_lshl_b32 s36, s36, 4")
        a("s_add_u32 s36, s36, 0x11000000")
        a("s_add_u32 s72, s28, s36")
        a("s_addc_u32 s73, s29, 0")
        a(f"v_mov_b32 v{tmp}, s40")
        a(f"v_mov_b32 v{tmp+1}, s68")
        a(f"v_mov_b32 v{tmp+2}, s70")
        a(f"v_mov_b32 v{tmp+3}, 0")
        a(f"v_mov_b32 v{tmp+4}, 0")
        a("s_mov_b64 exec, 1")
        a(f"global_store_dwordx4 v{tmp+4}, v[{tmp}:{tmp+3}], s[72:73]")
        a("s_mov_b64 exec, -1")
        a("s_waitcnt vmcnt(0)")
    if STAMP == 2:
        a("s_memrealtime s[72:73]")
        a("s_waitcnt vmcnt(0)")
        a("s_memrealtime s[70:71]")

    T4 = STAMP == 4
    stile = [74, 75]
    def t4_after_wait(b):
        if T4:
            a("s_memrealtime s[68:69]")
            a(f"s_mov_b32 s70, s{stile[b]}")
    def t4_store():
        if T4:
            a("s_lshl_b32 s71, s70, 3")
            a("s_mov_b64 exec, 1")
            a(f"v_mov_b32 v{vT}, s68")
            a(f"v_mov_b32 v{vT1}, s69")
            a(f"buffer_store_dwordx2 v[{vT}:{vT1}], v{nvx}, s[76:79], s71 offen")
            a("s_mov_b64 exec, -1")
    def t4_set(nb):
        if T4:
            a(f"s_lshr_b32 s{stile[nb]}, s16, 13")
    if T4:
        assert NB == 2
        nvx = nv
        nv += 1
        a(f"v_mov_b32 v{nvx}, 0")
        a("s_mov_b32 s70, 0x1000000")
        a(f"s_add_u32 s74, s18, s34")
        a("s_lshl_b32 s36, s32, 1")
        a("s_add_u32 s36, s36, s33")
        a("s_lshl_b32 s36, s36, 14")
        a("s_add_u32 s36, s36, 0x20000000")
        a("s_add_u32 s76, s28, s36")
        a("s_addc_u32 s77, s29, 0")
        a("s_and_b32 s77, s77, 0xffff")
        a("s_mov_b32 s78, 16384")
        a("s_mov_b32 s79, 0x20000")

    def grab_lds():
        a("s_mov_b64 exec, 1")
        a(f"ds_add_rtn_u64 v[{vT}:{vT1}], v{vCnt}, v[{vOne64}:{vOne64+1}]")
        a("s_mov_b64 exec, -1")

    def grab_pool():
        a("s_mov_b32 s23, 1")
        a("s_atomic_add s23, s[52:53], 0x0 glc")

    for b in range(NB):
        nb = (b + NB - 1) % NB
        a.label(f"L_p1_{b}")
        grab_lds()
        a("s_waitcnt lgkmcnt(0)")
        a(f"v_readfirstlane_b32 s19, v{vT}")
        a(f"v_readfirstlane_b32 s22, v{vT1}")
        a("s_nop 2")
        if ROT:
            a("s_add_u32 s36, s19, s31")
            a(f"s_cmp_ge_u32 s36, {NP}")
            a(f"s_cselect_b32 s37, {NP}, 0")
            a("s_sub_u32 s36, s36, s37")
            a("s_add_u32 s36, s36, s18")
        else:
            a("s_add_u32 s36, s18, s19")
        a("s_lshl_b32 s16, s36, 13")
        a("s_lshl_b32 s17, s36, 6")
        a(f"s_cmp_ge_u32 s19, {NP-WT}")
        a(f"s_cbranch_scc1 L_sw_{b}")
        t4_store()
        t4_set(nb)
        loads(nb)
        a(f"s_waitcnt vmcnt({L*(NB-1)})")
        t4_after_wait(b)
        compute(b)
    a("s_branch L_p1_0")
    for b in range(NB):
        a.label(f"L_sw_{b}")
        a("s_cmp_lg_u32 s22, 0")
        a(f"s_cbranch_scc1 L_swok_{b}")
        a.label(f"L_swspin_{b}")
        a("s_sleep 4")
        a(f"ds_read_b64 v[{vT}:{vT1}], v{vCnt}")
        a("s_waitcnt lgkmcnt(0)")
        a(f"v_readfirstlane_b32 s22, v{vT1}")
        a("s_nop 2")
        a("s_cmp_eq_u32 s22, 0")
        a(f"s_cbranch_scc1 L_swspin_{b}")
        a.label(f"L_swok_{b}")
        grab_pool()
        a(f"s_branch L_p2m_{b}")
    for b in range(NB):
        nb = (b + NB - 1) % NB
        a.label(f"L_p2_{b}")
        a("s_waitcnt lgkmcnt(0)")
        a(f"s_cmp_ge_u32 s23, {NPOOL}")
        a(f"s_cbranch_scc1 L_dr_{b}")
        a(f"s_and_b32 s36, s23, {NX-1}")
        a(f"s_mul_i32 s36, s36, {TW}")
        a(f"s_lshr_b32 s37, s23, {loglx}")
        a("s_add_u32 s36, s36, s37")
        a(f"s_add_u32 s36, s36, {NP}")
        a("s_lshl_b32 s16, s36, 13")
        a("s_lshl_b32 s17, s36, 6")
        grab_pool()
        a.label(f"L_p2m_{b}")
        if T4:
            a("s_waitcnt lgkmcnt(0)") if False else None
        t4_store()
        t4_set(nb)
        loads(nb)
        a(f"s_waitcnt vmcnt({L*(NB-1)})")
        t4_after_wait(b)
        compute(b)
    a("s_branch L_p2_0")
    for b in range(NB):
        a.label(f"L_dr_{b}")
        a(f"buffer_load_dwordx4 v[{AUX}:{AUX+3}], v{vAuxOff}, s[64:67], 0 offen sc1")
        for k in range(NB - 1):
            a(f"s_waitcnt vmcnt({L*(NB-2-k)+1})")
            compute((b + k) % NB)
        if b + 1 < NB:
            a("s_branch L_loopdone")
    a.label("L_loopdone")
    if STAMP:
        a("s_memrealtime s[42:43]")
        a("s_waitcnt lgkmcnt(0)")
        a("v_mov_b32 v4, s42")
        a("v_mov_b32 v5, 96")
        a("s_mov_b64 exec, 1")
        a("ds_max_u32 v5, v4")
        a("s_mov_b64 exec, -1")
    a("v_and_b32 v4, 15, v0")
    a("v_lshrrev_b32 v5, 4, v0")
    a("s_cmp_lg_u32 s33, 0")
    a("s_cbranch_scc1 L_vend")
    a("s_waitcnt vmcnt(0)")
    Q = 8
    for j in range(4):
        a(f"v_lshlrev_b32 v{Q+2*j}, 16, v{AUX+j}")
        a(f"v_and_b32 v{Q+2*j+1}, 0xffff0000, v{AUX+j}")
    T = 16
    for i in range(4):
        a(f"v_mul_f32 v{T+i}, v{Q}, v{acc+i}")
    for dd in range(1, 8):
        for i in range(4):
            a(f"v_fmac_f32 v{T+i}, v{Q+dd}, v{acc+4*dd+i}")
    for sh in (8, 4, 2, 1):
        a("s_nop 1")
        for i in range(4):
            a(f"v_add_f32_dpp v{T+i}, v{T+i}, v{T+i} row_ror:{sh} row_mask:0xf bank_mask:0xf")
    a("v_lshlrev_b32 v6, 4, v5")
    a("v_cmp_eq_u32 vcc, 0, v4")
    a("s_and_saveexec_b64 s[48:49], vcc")
    for i in range(4):
        a(f"ds_add_f32 v6, v{T+i} offset:{L_SK + 4*i}")
    a("s_mov_b64 exec, 1")
    a(f"v_mov_b32 v6, {L_KC}")
    a("v_mov_b32 v7, 1")
    a("ds_add_rtn_u32 v7, v6, v7")
    a("s_mov_b64 exec, -1")
    a("s_waitcnt lgkmcnt(0)")
    a("v_readfirstlane_b32 s36, v7")
    a("s_nop 3")
    a(f"s_cmp_lg_u32 s36, {WT-1}")
    a("s_cbranch_scc1 L_fin")
    a("v_lshlrev_b32 v6, 2, v4")
    a(f"ds_read_b32 v7, v6 offset:{L_SK}")
    a("s_lshl_b32 s36, s30, 6")
    a("v_add_u32 v6, s36, v6")
    a("s_waitcnt lgkmcnt(0)")
    a("s_mov_b64 exec, 0xffff")
    a(f"global_store_dword v6, v7, s[54:55] offset:{C_KS} sc1")
    a("s_mov_b64 exec, -1")
    a("s_waitcnt vmcnt(0)")
    a("s_mov_b32 s36, 1")
    a(f"s_atomic_add s36, s[54:55], {C_KARR} glc")
    a("s_waitcnt lgkmcnt(0)")
    a(f"s_cmp_lg_u32 s36, {NX-1}")
    a("s_cbranch_scc1 L_fin")
    a("v_lshlrev_b32 v6, 2, v0")
    a(f"global_load_dword v8, v6, s[54:55] offset:{C_KS} sc1")
    a(f"global_load_dword v9, v6, s[54:55] offset:{C_KS+256} sc1")
    a("v_xor_b32 v6, 16, v0")
    a("v_lshlrev_b32 v6, 2, v6")
    a("v_xor_b32 v7, 32, v0")
    a("v_lshlrev_b32 v7, 2, v7")
    a("s_waitcnt vmcnt(0)")
    a("v_add_f32 v8, v8, v9")
    a("ds_bpermute_b32 v9, v6, v8")
    a("s_waitcnt lgkmcnt(0)")
    a("v_add_f32 v8, v8, v9")
    a("ds_bpermute_b32 v9, v7, v8")
    a("s_waitcnt lgkmcnt(0)")
    a("v_add_f32 v8, v8, v9")
    a("v_cvt_pk_bf16_f32 v8, v8, v8")
    a("v_lshlrev_b32 v8, 16, v8")
    a("v_mul_f32 v8, 0x3db504f3, v8")
    a("v_cvt_pk_bf16_f32 v8, v8, v8")
    a("v_lshlrev_b32 v8, 16, v8")
    a("v_mov_b32 v9, v8")
    for sh in (8, 4, 2, 1):
        a("s_nop 1")
        a(f"v_max_f32_dpp v9, v9, v9 row_ror:{sh} row_mask:0xf bank_mask:0xf")
    a("v_sub_f32 v8, v8, v9")
    a("v_mul_f32 v8, 0x3fb8aa3b, v8")
    a("v_exp_f32 v8, v8")
    a("s_nop 0")
    a("v_mov_b32 v9, v8")
    for sh in (8, 4, 2, 1):
        a("s_nop 1")
        a(f"v_add_f32_dpp v9, v9, v9 row_ror:{sh} row_mask:0xf bank_mask:0xf")
    a("v_rcp_f32 v9, v9")
    a("s_nop 0")
    a("v_mul_f32 v8, v8, v9")
    a("v_cvt_pk_bf16_f32 v8, v8, v8")
    a("v_lshlrev_b32 v8, 16, v8")
    a("v_lshlrev_b32 v6, 2, v4")
    a("s_mov_b64 exec, 0xffff")
    a(f"global_store_dword v6, v8, s[54:55] offset:{C_P} sc1")
    a("s_branch L_fin")
    a.label("L_vend")
    a(f"s_mov_b32 s36, {P['SPIN']}")
    a.label("L_pchk")
    a("s_waitcnt vmcnt(0)")
    a(f"v_cmp_eq_u32 vcc, -1, v{AUX}")
    a(f"v_cmp_eq_u32 s[48:49], -1, v{AUX+1}")
    a("s_or_b64 vcc, vcc, s[48:49]")
    a(f"v_cmp_eq_u32 s[48:49], -1, v{AUX+2}")
    a("s_or_b64 vcc, vcc, s[48:49]")
    a(f"v_cmp_eq_u32 s[48:49], -1, v{AUX+3}")
    a("s_or_b64 vcc, vcc, s[48:49]")
    a("s_cbranch_vccz L_pok")
    a("s_sub_u32 s36, s36, 1")
    a("s_cbranch_scc1 L_pok")
    a("s_sleep 8")
    a(f"buffer_load_dwordx4 v[{AUX}:{AUX+3}], v{vAuxOff}, s[64:67], 0 offen sc1")
    a("s_branch L_pchk")
    a.label("L_pok")
    if STAMP:
        a("s_memrealtime s[42:43]")
        a("s_waitcnt lgkmcnt(0)")
        a("v_mov_b32 v6, s42")
        a("v_mov_b32 v7, 100")
        a("s_mov_b64 exec, 1")
        a("ds_max_u32 v7, v6")
        a("s_mov_b64 exec, -1")
    O = 8
    for dd in range(8):
        a(f"v_mul_f32 v{O+dd}, v{AUX}, v{acc+4*dd}")
    for i in range(1, 4):
        for dd in range(8):
            a(f"v_fmac_f32 v{O+dd}, v{AUX+i}, v{acc+4*dd+i}")
    a("s_nop 1")
    a(f"v_permlane32_swap_b32 v{O+0}, v{O+4}")
    a(f"v_permlane32_swap_b32 v{O+2}, v{O+6}")
    a(f"v_permlane32_swap_b32 v{O+1}, v{O+5}")
    a(f"v_permlane32_swap_b32 v{O+3}, v{O+7}")
    a("s_nop 1")
    a(f"v_add_f32 v{O+0}, v{O+0}, v{O+4}")
    a(f"v_add_f32 v{O+2}, v{O+2}, v{O+6}")
    a(f"v_add_f32 v{O+1}, v{O+1}, v{O+5}")
    a(f"v_add_f32 v{O+3}, v{O+3}, v{O+7}")
    a("s_nop 1")
    a(f"v_permlane16_swap_b32 v{O+0}, v{O+2}")
    a(f"v_permlane16_swap_b32 v{O+1}, v{O+3}")
    a("s_nop 1")
    a(f"v_add_f32 v{O+0}, v{O+0}, v{O+2}")
    a(f"v_add_f32 v{O+1}, v{O+1}, v{O+3}")
    a("v_lshlrev_b32 v6, 3, v0")
    a("s_lshl_b32 s36, s34, 9")
    a("v_add_u32 v7, s36, v6")
    a(f"ds_write_b64 v7, v[{O}:{O+1}] offset:{L_OL}")
    a("s_waitcnt lgkmcnt(0)")
    a("s_barrier")
    if STAMP:
        a("s_memrealtime s[44:45]")
    a(f"s_cmp_lg_u32 s3, {WT}")
    a("s_cbranch_scc1 L_fin")
    for w in range(WT):
        a(f"ds_read_b64 v[{10+2*w}:{11+2*w}], v6 offset:{L_OL + 512*w}")
    for w in range(WT):
        a(f"s_waitcnt lgkmcnt({WT-1-w})")
        if w == 0:
            a("v_mov_b32 v8, v10")
            a("v_mov_b32 v9, v11")
        else:
            a(f"v_add_f32 v8, v8, v{10+2*w}")
            a(f"v_add_f32 v9, v9, v{11+2*w}")
    a("s_cmp_eq_u32 s30, 0")
    a("s_cbranch_scc1 L_final")
    a("v_mov_b32 v10, 0x7fc00000")
    a("v_cmp_eq_u32 vcc, -1, v8")
    a("v_cmp_eq_u32 s[48:49], -1, v9")
    a("s_lshl_b32 s36, s30, 9")
    a("v_add_u32 v6, s36, v6")
    a("v_cndmask_b32 v8, v8, v10, vcc")
    a("v_cndmask_b32 v9, v9, v10, s[48:49]")
    a(f"global_store_dwordx2 v6, v[8:9], s[54:55] offset:{C_O} sc1")
    a("s_branch L_fin")
    a.label("L_final")
    a(f"v_add_u32 v6, {C_O}, v6")
    a(f"s_mov_b32 s36, {P['SPIN']}")
    a.label("L_opoll")
    for x in range(1, NX):
        a(f"global_load_dwordx2 v[{10+2*x}:{11+2*x}], v6, s[54:55] offset:{x*512} sc1")
    a("s_waitcnt vmcnt(0)")
    a(f"v_cmp_eq_u32 vcc, -1, v12")
    for r in range(13, 10 + 2 * NX):
        a(f"v_cmp_eq_u32 s[48:49], -1, v{r}")
        a("s_or_b64 vcc, vcc, s[48:49]")
    a("s_cbranch_vccz L_ook")
    a("s_sub_u32 s36, s36, 1")
    a("s_cbranch_scc1 L_ook")
    a("s_sleep 2")
    a("s_branch L_opoll")
    a.label("L_ook")
    for x in range(1, NX):
        a(f"v_add_f32 v8, v8, v{10+2*x}")
        a(f"v_add_f32 v9, v9, v{11+2*x}")
    a("v_cvt_pk_bf16_f32 v8, v8, v9")
    a("s_lshl_b32 s36, s32, 8")
    a("s_add_u32 s12, s60, s36")
    a("s_addc_u32 s13, s61, 0")
    a("s_and_b32 s13, s13, 0xffff")
    a("s_mov_b32 s14, 256")
    a("s_mov_b32 s15, 0x20000")
    a("v_lshlrev_b32 v6, 4, v4")
    a("v_lshl_add_u32 v6, v5, 2, v6")
    a("buffer_store_dword v8, v6, s[12:15], 0 offen")
    a.label("L_fin")
    if STAMP:
        a(f"s_cmp_lg_u32 s3, {WT}")
        a("s_cbranch_scc1 L_done")
        a("s_waitcnt vmcnt(0)")
        a("s_memrealtime s[46:47]")
        a("s_getreg_b32 s37, hwreg(HW_REG_XCC_ID)")
        a("s_waitcnt lgkmcnt(0)")
        a("s_lshl_b32 s36, s2, 5")
        a("s_add_u32 s36, s36, 0x10000000")
        a("s_add_u32 s8, s28, s36")
        a("s_addc_u32 s9, s29, 0")
        a("s_and_b32 s9, s9, 0xffff")
        a("s_mov_b32 s10, 32")
        a("s_mov_b32 s11, 0x20000")
        a("v_mov_b32 v9, 96")
        a("ds_read_b64 v[10:11], v9")
        a("v_mov_b32 v4, s40")
        a("v_mov_b32 v6, s44")
        a("v_mov_b32 v7, s46")
        a("v_mov_b32 v8, s37")
        a("s_waitcnt lgkmcnt(0)")
        a("v_mov_b32 v5, v10")
        a("v_mov_b32 v9, v11")
        if STAMP == 2:
            a("v_mov_b32 v5, s68")
            a("v_mov_b32 v6, s72")
            a("v_mov_b32 v7, s70")
            a("v_mov_b32 v9, 0")
        a("buffer_store_dword v9, v12, s[8:11], 0 offen offset:20") if False else None
        a("v_mov_b32 v12, 0")
        a("s_mov_b64 exec, 1")
        a("buffer_store_dwordx4 v[4:7], v12, s[8:11], 0 offen")
        a("buffer_store_dwordx2 v[8:9], v12, s[8:11], 0 offen offset:16")
    a.label("L_done")
    a("s_endpgm")
    lds = P["LDS"]
    hdr = HDR + f"; @launch grid=({NWG},1,1) block=({WPB*64},1,1) lds={lds}\n"
    return hdr + '.amdgcn_target "amdgcn-amd-amdhsa--gfx950"\n.text\n' + a.text() + desc(KN, nv, 84)


DEF = dict(WPB=16, NX=8, NB=2, S=32, KFLAGS="nt", SPIN=100000, LDS=98304)

if __name__ == "__main__":
    P = dict(DEF)
    out = sys.argv[1]
    for kv in sys.argv[2:]:
        k, v = kv.split("=")
        try:
            v = int(v)
        except ValueError:
            v = v.replace("+", " ")
        P[k] = v
    open(out, "w").write(gen(P))
    print("wrote", out, P)
```

```python
import sys, re
from gen2 import A, desc, HDR, KN, ROW_E


WS_CTL = 0
C_POOL = 0
C_KARR = 512
C_P = 1024
C_KS = 1536
C_O = 2048
L_KC = 16
L_SK = 32
L_OL = 128


def gen(P):
    a = A()
    WPB, NX, NB = P["WPB"], P["NX"], P["NB"]
    sched = [tuple(int(v) for v in seg.split("x")) for seg in P["SCHED"].split(",")]
    S = sum(c * z for c, z in sched)
    NT = sum(c for c, z in sched)
    kfl = " " + P["KFLAGS"] if P["KFLAGS"] else ""
    WT = WPB // 2
    NR = 65536 // NX
    TW = NR // 32
    NP = TW - S
    NPOOL = NX * S
    NWG = 32 * NX
    loglx = NX.bit_length() - 1
    L = 9
    vOffK, vOffE = 1, 2
    base = 4
    buf = [base + 36 * b for b in range(NB)]
    tmp = base + 36 * NB
    acc = tmp + 8
    nv = acc + 32
    vT, vT1, vCnt, vAuxOff = nv, nv + 1, nv + 2, nv + 3
    assert vT % 2 == 0
    vOne64 = nv + 4
    AUX = nv + 6
    nv += 10
    STAMP = P.get("STAMP", 0)
    assert NX == 8
    assert NP >= (NB - 1) * WT + WT

    a.raw(f".globl {KN}\n.p2align 8\n.type {KN},@function\n{KN}:")
    a(f"s_cmp_ge_u32 s2, {NWG}")
    a("s_cbranch_scc1 L_done")
    a("s_load_dwordx4 s[4:7], s[0:1], 8")
    a("s_load_dwordx4 s[24:27], s[0:1], 24")
    if STAMP:
        a("s_memrealtime s[40:41]")
    a("v_lshrrev_b32 v3, 6, v0")
    a("v_and_b32 v0, 63, v0")
    a("v_readfirstlane_b32 s3, v3")
    a("v_lshrrev_b32 v3, 4, v0")
    a("v_and_b32 v2, 15, v0")
    a("v_lshlrev_b32 v1, 11, v3")
    a("v_lshl_add_u32 v1, v2, 4, v1")
    a("v_lshlrev_b32 v2, 17, v2")
    a("v_lshl_add_u32 v2, v3, 4, v2")
    a(f"s_and_b32 s30, s2, {NX-1}")
    a(f"s_lshr_b32 s32, s2, {loglx}")
    a(f"s_lshr_b32 s33, s3, {WT.bit_length()-1}")
    a(f"s_and_b32 s34, s3, {WT-1}")
    a("s_lshl_b32 s35, s32, 24")
    a(f"s_mul_i32 s18, s30, {TW}")
    a("s_mov_b32 s10, 0x1000000")
    a("s_mov_b32 s11, 0x20000")
    a("s_mov_b32 s14, 0x200000")
    a("s_mov_b32 s15, 0x20000")
    ROT = P.get("ROT", 0)
    if ROT:
        a(f"s_mul_i32 s31, s32, {ROT}")
        if P.get("ROTX"):
            a(f"s_mul_i32 s36, s30, {P['ROTX']}")
            a("s_add_u32 s31, s31, s36")
        for _ in range(2):
            a(f"s_cmp_ge_u32 s31, {NP}")
            a(f"s_cselect_b32 s36, {NP}, 0")
            a("s_sub_u32 s31, s31, s36")
        a("s_add_u32 s19, s31, s34")
        a(f"s_cmp_ge_u32 s19, {NP}")
        a(f"s_cselect_b32 s36, {NP}, 0")
        a("s_sub_u32 s19, s19, s36")
        a("s_add_u32 s19, s19, s18")
        assert NB == 2
    else:
        a("s_add_u32 s19, s18, s34")
    a("s_lshl_b32 s16, s19, 13")
    a("s_lshl_b32 s17, s19, 6")
    a("s_cmp_eq_u32 s33, 0")
    a("s_waitcnt lgkmcnt(0)")
    if STAMP == 2:
        a("s_memrealtime s[68:69]")
    a("s_cselect_b32 s8, s4, s6")
    a("s_cselect_b32 s9, s5, s7")
    a("s_cselect_b32 s12, s24, s26")
    a("s_cselect_b32 s13, s25, s27")
    a("s_add_u32 s8, s8, s35")
    a("s_addc_u32 s9, s9, 0")
    a("s_and_b32 s9, s9, 0xffff")
    a("s_and_b32 s13, s13, 0xffff")

    def loads(b):
        r = buf[b]
        for j in range(8):
            a(f"buffer_load_dwordx4 v[{r+4*j}:{r+4*j+3}], v{vOffK}, s[8:11], s16 offen offset:{j*256}{kfl}")
        a(f"buffer_load_dwordx4 v[{r+32}:{r+35}], v{vOffE}, s[12:15], s17 offen")

    def compute(b):
        r = buf[b]
        def perm(dd):
            i, h = dd >> 1, dd & 1
            t = tmp + 4 * (dd & 1)
            for p in range(4):
                a(f"v_perm_b32 v{t+p}, v{r+4*(2*p+1)+i}, v{r+4*(2*p)+i}, s{20+h}")
        def mfma(dd):
            t = tmp + 4 * (dd & 1)
            a(f"v_mfma_f32_16x16x32_bf16 v[{acc+4*dd}:{acc+4*dd+3}], v[{r+32}:{r+35}], v[{t}:{t+3}], v[{acc+4*dd}:{acc+4*dd+3}]")
        perm(0); perm(1)
        for dd in range(7):
            mfma(dd)
            if dd + 2 < 8:
                perm(dd + 2)
        a("s_nop 1")
        mfma(7)

    for b in range(NB - 1):
        loads(b)
        if b + 1 < NB - 1:
            a(f"s_add_u32 s16, s16, {WT*8192}")
            a(f"s_add_u32 s17, s17, {WT*64}")
    if STAMP == 3:
        a("s_memrealtime s[68:69]")
    a("s_load_dwordx2 s[56:57], s[0:1], 0")
    a("s_load_dwordx4 s[60:63], s[0:1], 40")
    a("s_load_dwordx2 s[28:29], s[0:1], 56")
    a("s_mov_b32 s20, 0x05040100")
    a("s_mov_b32 s21, 0x07060302")
    a("s_cmp_lg_u32 s3, 0")
    a("s_cbranch_scc1 L_noinit")
    a(f"v_lshlrev_b32 v3, 4, v0")
    for i in range(4):
        a(f"v_mov_b32 v{tmp+i}, 0")
    a(f"ds_write_b128 v3, v[{tmp}:{tmp+3}]")
    a(f"v_mov_b32 v{tmp}, {(NB-1)*WT}")
    a(f"v_mov_b32 v{tmp+2}, {(NB-1)*WT}")
    a("v_mov_b32 v3, 0")
    a(f"ds_write_b128 v3, v[{tmp}:{tmp+3}]")
    a.label("L_noinit")
    a(f"s_lshl_b32 s36, s33, 3")
    a(f"v_mov_b32 v{vCnt}, s36")
    a(f"v_mov_b32 v{vOne64}, 1")
    a(f"v_mov_b32 v{vOne64+1}, 0")
    a(f"v_and_b32 v{vAuxOff}, 15, v0")
    a(f"v_lshrrev_b32 v3, 4, v0")
    a("s_cmp_eq_u32 s33, 0")
    a("s_cselect_b64 vcc, -1, 0")
    a(f"v_cndmask_b32 v{vAuxOff}, v3, v{vAuxOff}, vcc")
    a(f"v_lshlrev_b32 v{vAuxOff}, 4, v{vAuxOff}")
    for i in range(32):
        a(f"v_mov_b32 v{acc+i}, 0")
    a("s_waitcnt lgkmcnt(0)")
    a("s_lshl_b32 s36, s32, 13")
    a("s_add_u32 s54, s28, s36")
    a("s_addc_u32 s55, s29, 0")
    a("s_lshl_b32 s36, s33, 8")
    a("s_add_u32 s52, s54, s36")
    a("s_addc_u32 s53, s55, 0")
    a("s_lshl_b32 s36, s32, 8")
    a("s_add_u32 s36, s56, s36")
    a("s_addc_u32 s37, s57, 0")
    a(f"s_add_u32 s38, s54, {C_P}")
    a("s_addc_u32 s39, s55, 0")
    a("s_cmp_eq_u32 s33, 0")
    a("s_cselect_b32 s64, s36, s38")
    a("s_cselect_b32 s65, s37, s39")
    a("s_cselect_b32 s66, 256, 64")
    a("s_and_b32 s65, s65, 0xffff")
    a("s_mov_b32 s67, 0x20000")
    a("s_barrier")
    a("s_cmp_lg_u32 s3, 0")
    a("s_cbranch_scc1 L_loop0")
    a("s_lshl_b32 s36, s32, 3")
    a("s_add_u32 s50, s62, s36")
    a("s_addc_u32 s51, s63, 0")
    a("s_mov_b32 s36, 1")
    a("s_atomic_or s36, s[50:51], 0x0 glc")
    a("s_waitcnt lgkmcnt(0)")
    a("s_and_b32 s37, s36, 1")
    a("s_cbranch_scc1 L_poll")
    a(f"v_mov_b32 v{tmp}, 0")
    a(f"v_lshrrev_b32 v{tmp+1}, 3, v0")
    a(f"v_lshlrev_b32 v{tmp+1}, 8, v{tmp+1}")
    a(f"v_and_b32 v{tmp+2}, 7, v0")
    a(f"v_lshl_add_u32 v{tmp+1}, v{tmp+2}, 2, v{tmp+1}")
    for i in range(4):
        a(f"v_mov_b32 v{tmp+4+i}, -1")
    a(f"v_lshlrev_b32 v{tmp+2}, 4, v0")
    a(f"v_lshlrev_b32 v{tmp+3}, 2, v0")
    a(f"v_add_u32 v{vT}, {C_O}, v{tmp+2}")
    for i in range(4):
        a(f"global_store_dwordx4 v{vT}, v[{tmp+4}:{tmp+7}], s[54:55] offset:{i*1024} sc1")
    a("s_mov_b64 exec, 0xffff")
    a(f"global_store_dword v{tmp+3}, v{tmp+4}, s[54:55] offset:{C_P} sc1")
    a("s_mov_b64 exec, 0x1ffff")
    a(f"global_store_dword v{tmp+1}, v{tmp}, s[54:55] sc1")
    a("s_mov_b64 exec, -1")
    a("s_waitcnt vmcnt(0)")
    a("s_mov_b32 s36, 2")
    a("s_atomic_or s36, s[50:51], 0x0 glc")
    a("s_waitcnt lgkmcnt(0)")
    a("s_branch L_setready")
    a.label("L_poll")
    a("s_and_b32 s37, s36, 2")
    a("s_cbranch_scc1 L_setready")
    a("s_sleep 4")
    a("s_mov_b32 s36, 0")
    a("s_atomic_or s36, s[50:51], 0x0 glc")
    a("s_waitcnt lgkmcnt(0)")
    a("s_branch L_poll")
    a.label("L_setready")
    a(f"v_mov_b32 v{tmp}, 0")
    a(f"v_mov_b32 v{tmp+2}, 0")
    a(f"v_mov_b32 v{tmp+3}, 1")
    a("s_mov_b64 exec, 1")
    a(f"ds_add_u64 v{tmp}, v[{tmp+2}:{tmp+3}]")
    a(f"ds_add_u64 v{tmp}, v[{tmp+2}:{tmp+3}] offset:8")
    a("s_mov_b64 exec, -1")
    a.label("L_loop0")
    if P.get("PREWARM"):
        a("s_cmp_lg_u32 s34, 1")
        a("s_cbranch_scc1 L_nowarm")
        a(f"v_lshlrev_b32 v{tmp}, 21, v0")
        a(f"v_add_u32 v{tmp}, {NP*8192 + 4096}, v{tmp}")
        a("s_mov_b64 exec, 0xff")
        a(f"buffer_load_dword v{tmp+1}, v{tmp}, s[8:11], 0 offen nt")
        a("s_mov_b64 exec, -1")
        a("s_waitcnt vmcnt(0)")
        a.label("L_nowarm")
    if STAMP == 3:
        a("s_memrealtime s[72:73]")
        a("s_waitcnt vmcnt(0)")
        a("s_memrealtime s[70:71]")
        a("s_waitcnt lgkmcnt(0)")
        a(f"s_mul_i32 s36, s2, {WPB}")
        a("s_add_u32 s36, s36, s3")
        a("s_lshl_b32 s36, s36, 4")
        a("s_add_u32 s36, s36, 0x11000000")
        a("s_add_u32 s72, s28, s36")
        a("s_addc_u32 s73, s29, 0")
        a(f"v_mov_b32 v{tmp}, s40")
        a(f"v_mov_b32 v{tmp+1}, s68")
        a(f"v_mov_b32 v{tmp+2}, s70")
        a(f"v_mov_b32 v{tmp+3}, 0")
        a(f"v_mov_b32 v{tmp+4}, 0")
        a("s_mov_b64 exec, 1")
        a(f"global_store_dwordx4 v{tmp+4}, v[{tmp}:{tmp+3}], s[72:73]")
        a("s_mov_b64 exec, -1")
        a("s_waitcnt vmcnt(0)")
    if STAMP == 2:
        a("s_memrealtime s[72:73]")
        a("s_waitcnt vmcnt(0)")
        a("s_memrealtime s[70:71]")

    T4 = STAMP == 4
    stile = [74, 75]
    def t4_after_wait(b):
        if T4:
            a("s_memrealtime s[68:69]")
            a(f"s_mov_b32 s70, s{stile[b]}")
    def t4_store():
        if T4:
            a("s_lshl_b32 s71, s70, 3")
            a("s_mov_b64 exec, 1")
            a(f"v_mov_b32 v{vT}, s68")
            a(f"v_mov_b32 v{vT1}, s69")
            a(f"buffer_store_dwordx2 v[{vT}:{vT1}], v{nvx}, s[76:79], s71 offen")
            a("s_mov_b64 exec, -1")
    def t4_set(nb):
        if T4:
            a(f"s_lshr_b32 s{stile[nb]}, s16, 13")
    if T4:
        assert NB == 2
        nvx = nv
        nv += 1
        a(f"v_mov_b32 v{nvx}, 0")
        a("s_mov_b32 s70, 0x1000000")
        a(f"s_add_u32 s74, s18, s34")
        a("s_lshl_b32 s36, s32, 1")
        a("s_add_u32 s36, s36, s33")
        a("s_lshl_b32 s36, s36, 14")
        a("s_add_u32 s36, s36, 0x20000000")
        a("s_add_u32 s76, s28, s36")
        a("s_addc_u32 s77, s29, 0")
        a("s_and_b32 s77, s77, 0xffff")
        a("s_mov_b32 s78, 16384")
        a("s_mov_b32 s79, 0x20000")

    def grab_lds():
        a("s_mov_b64 exec, 1")
        a(f"ds_add_rtn_u64 v[{vT}:{vT1}], v{vCnt}, v[{vOne64}:{vOne64+1}]")
        a("s_mov_b64 exec, -1")

    def grab_pool():
        a("s_mov_b32 s23, 1")
        a("s_atomic_add s23, s[52:53], s58 glc")

    for b in range(NB):
        nb = (b + NB - 1) % NB
        a.label(f"L_p1_{b}")
        grab_lds()
        a("s_waitcnt lgkmcnt(0)")
        a(f"v_readfirstlane_b32 s19, v{vT}")
        a(f"v_readfirstlane_b32 s22, v{vT1}")
        a("s_nop 2")
        if ROT:
            a("s_add_u32 s36, s19, s31")
            a(f"s_cmp_ge_u32 s36, {NP}")
            a(f"s_cselect_b32 s37, {NP}, 0")
            a("s_sub_u32 s36, s36, s37")
            a("s_add_u32 s36, s36, s18")
        else:
            a("s_add_u32 s36, s18, s19")
        a("s_lshl_b32 s16, s36, 13")
        a("s_lshl_b32 s17, s36, 6")
        a(f"s_cmp_ge_u32 s19, {NP-WT}")
        a(f"s_cbranch_scc1 L_sw_{b}")
        t4_store()
        t4_set(nb)
        loads(nb)
        a(f"s_waitcnt vmcnt({L*(NB-1)})")
        t4_after_wait(b)
        compute(b)
    a("s_branch L_p1_0")
    for b in range(NB):
        a.label(f"L_sw_{b}")
        a("s_cmp_lg_u32 s22, 0")
        a(f"s_cbranch_scc1 L_swok_{b}")
        a.label(f"L_swspin_{b}")
        a("s_sleep 4")
        a(f"ds_read_b64 v[{vT}:{vT1}], v{vCnt}")
        a("s_waitcnt lgkmcnt(0)")
        a(f"v_readfirstlane_b32 s22, v{vT1}")
        a("s_nop 2")
        a("s_cmp_eq_u32 s22, 0")
        a(f"s_cbranch_scc1 L_swspin_{b}")
        a.label(f"L_swok_{b}")
        a("s_lshl_b32 s58, s30, 2")
        a(f"s_add_u32 s59, s18, {NP}")
        a(f"s_mov_b32 s80, {P['RETRY']}")
        a("s_mov_b32 s82, 0")
        grab_pool()
        a(f"s_branch L_p2m_{b}")
    for b in range(NB):
        nb = (b + NB - 1) % NB
        a.label(f"L_p2_{b}")
        a("s_cmp_lg_u32 s82, 0")
        a(f"s_cbranch_scc1 L_p2c_{b}")
        a("s_waitcnt lgkmcnt(0)")
        a(f"s_cmp_ge_u32 s23, {NT}")
        a(f"s_cbranch_scc1 L_st_{b}")
        J = 0; O = 0
        if P.get("ILVT", 1):
            for k, (c, z) in enumerate(sched):
                off = (O - J) & 0xffffffff
                if k == 0:
                    a(f"s_mov_b32 s82, {z}")
                    a(f"s_mov_b32 s37, {off}")
                    a(f"s_mov_b32 s83, {c}")
                else:
                    a(f"s_cmp_ge_u32 s23, {J}")
                    a(f"s_cselect_b32 s82, {z}, s82")
                    a(f"s_cselect_b32 s37, {off}, s37")
                    if c != sched[k-1][0] and z > 1:
                        a(f"s_cselect_b32 s83, {c}, s83")
                J += c; O += c * z
            a("s_add_u32 s81, s23, s37")
            a("s_add_u32 s81, s81, s59")
        else:
            for k, (c, z) in enumerate(sched):
                lz = z.bit_length() - 1
                assert 1 << lz == z
                off = (O - (J << lz)) & 0xffffffff
                if k == 0:
                    a(f"s_mov_b32 s36, {lz}")
                    a(f"s_mov_b32 s37, {off}")
                else:
                    a(f"s_cmp_ge_u32 s23, {J}")
                    a(f"s_cselect_b32 s36, {lz}, s36")
                    a(f"s_cselect_b32 s37, {off}, s37")
                J += c; O += c * z
            a("s_lshl_b32 s81, s23, s36")
            a("s_add_u32 s81, s81, s37")
            a("s_add_u32 s81, s81, s59")
            a("s_lshl_b32 s82, 1, s36")
            a("s_mov_b32 s83, 1")
        a.label(f"L_p2c_{b}")
        a("s_lshl_b32 s16, s81, 13")
        a("s_lshl_b32 s17, s81, 6")
        a("s_add_u32 s81, s81, s83")
        a("s_sub_u32 s82, s82, 1")
        a("s_cmp_lg_u32 s82, 0")
        a(f"s_cbranch_scc1 L_p2m_{b}")
        grab_pool()
        a.label(f"L_p2m_{b}")
        if T4:
            a("s_waitcnt lgkmcnt(0)") if False else None
        t4_store()
        t4_set(nb)
        loads(nb)
        a(f"s_waitcnt vmcnt({L*(NB-1)})")
        t4_after_wait(b)
        compute(b)
    a("s_branch L_p2_0")
    for b in range(NB):
        a.label(f"L_st_{b}")
        a("s_cmp_eq_u32 s80, 0")
        a(f"s_cbranch_scc1 L_dr_{b}")
        a("s_sub_u32 s80, s80, 1")
        a("s_load_dwordx8 s[84:91], s[52:53], 0x0 glc")
        a("s_waitcnt lgkmcnt(0)")
        a("s_mov_b32 s36, s84")
        a("s_mov_b32 s37, 0")
        for x in range(1, NX):
            a(f"s_cmp_lt_u32 s{84+x}, s36")
            a(f"s_cselect_b32 s36, s{84+x}, s36")
            a(f"s_cselect_b32 s37, {x}, s37")
        a(f"s_cmp_ge_u32 s36, {NT}")
        a(f"s_cbranch_scc1 L_dr_{b}")
        a("s_lshl_b32 s58, s37, 2")
        a(f"s_mul_i32 s59, s37, {TW}")
        a(f"s_add_u32 s59, s59, {NP}")
        grab_pool()
        a(f"s_branch L_p2_{b}")
    for b in range(NB):
        a.label(f"L_dr_{b}")
        a(f"buffer_load_dwordx4 v[{AUX}:{AUX+3}], v{vAuxOff}, s[64:67], 0 offen sc1")
        for k in range(NB - 1):
            a(f"s_waitcnt vmcnt({L*(NB-2-k)+1})")
            compute((b + k) % NB)
        if b + 1 < NB:
            a("s_branch L_loopdone")
    a.label("L_loopdone")
    if STAMP:
        a("s_memrealtime s[42:43]")
        a("s_waitcnt lgkmcnt(0)")
        a("v_mov_b32 v4, s42")
        a("v_mov_b32 v5, 96")
        a("s_mov_b64 exec, 1")
        a("ds_max_u32 v5, v4")
        a("s_mov_b64 exec, -1")
    a("v_and_b32 v4, 15, v0")
    a("v_lshrrev_b32 v5, 4, v0")
    a("s_cmp_lg_u32 s33, 0")
    a("s_cbranch_scc1 L_vend")
    a("s_waitcnt vmcnt(0)")
    Q = 8
    for j in range(4):
        a(f"v_lshlrev_b32 v{Q+2*j}, 16, v{AUX+j}")
        a(f"v_and_b32 v{Q+2*j+1}, 0xffff0000, v{AUX+j}")
    T = 16
    for i in range(4):
        a(f"v_mul_f32 v{T+i}, v{Q}, v{acc+i}")
    for dd in range(1, 8):
        for i in range(4):
            a(f"v_fmac_f32 v{T+i}, v{Q+dd}, v{acc+4*dd+i}")
    for sh in (8, 4, 2, 1):
        a("s_nop 1")
        for i in range(4):
            a(f"v_add_f32_dpp v{T+i}, v{T+i}, v{T+i} row_ror:{sh} row_mask:0xf bank_mask:0xf")
    a("v_lshlrev_b32 v6, 4, v5")
    a("v_cmp_eq_u32 vcc, 0, v4")
    a("s_and_saveexec_b64 s[48:49], vcc")
    for i in range(4):
        a(f"ds_add_f32 v6, v{T+i} offset:{L_SK + 4*i}")
    a("s_mov_b64 exec, 1")
    a(f"v_mov_b32 v6, {L_KC}")
    a("v_mov_b32 v7, 1")
    a("ds_add_rtn_u32 v7, v6, v7")
    a("s_mov_b64 exec, -1")
    a("s_waitcnt lgkmcnt(0)")
    a("v_readfirstlane_b32 s36, v7")
    a("s_nop 3")
    a(f"s_cmp_lg_u32 s36, {WT-1}")
    a("s_cbranch_scc1 L_fin")
    a("v_lshlrev_b32 v6, 2, v4")
    a(f"ds_read_b32 v7, v6 offset:{L_SK}")
    a("s_lshl_b32 s36, s30, 6")
    a("v_add_u32 v6, s36, v6")
    a("s_waitcnt lgkmcnt(0)")
    a("s_mov_b64 exec, 0xffff")
    a(f"global_store_dword v6, v7, s[54:55] offset:{C_KS} sc1")
    a("s_mov_b64 exec, -1")
    a("s_waitcnt vmcnt(0)")
    a("s_mov_b32 s36, 1")
    a(f"s_atomic_add s36, s[54:55], {C_KARR} glc")
    a("s_waitcnt lgkmcnt(0)")
    a(f"s_cmp_lg_u32 s36, {NX-1}")
    a("s_cbranch_scc1 L_fin")
    a("v_lshlrev_b32 v6, 2, v0")
    a(f"global_load_dword v8, v6, s[54:55] offset:{C_KS} sc1")
    a(f"global_load_dword v9, v6, s[54:55] offset:{C_KS+256} sc1")
    a("v_xor_b32 v6, 16, v0")
    a("v_lshlrev_b32 v6, 2, v6")
    a("v_xor_b32 v7, 32, v0")
    a("v_lshlrev_b32 v7, 2, v7")
    a("s_waitcnt vmcnt(0)")
    a("v_add_f32 v8, v8, v9")
    a("ds_bpermute_b32 v9, v6, v8")
    a("s_waitcnt lgkmcnt(0)")
    a("v_add_f32 v8, v8, v9")
    a("ds_bpermute_b32 v9, v7, v8")
    a("s_waitcnt lgkmcnt(0)")
    a("v_add_f32 v8, v8, v9")
    a("v_cvt_pk_bf16_f32 v8, v8, v8")
    a("v_lshlrev_b32 v8, 16, v8")
    a("v_mul_f32 v8, 0x3db504f3, v8")
    a("v_cvt_pk_bf16_f32 v8, v8, v8")
    a("v_lshlrev_b32 v8, 16, v8")
    a("v_mov_b32 v9, v8")
    for sh in (8, 4, 2, 1):
        a("s_nop 1")
        a(f"v_max_f32_dpp v9, v9, v9 row_ror:{sh} row_mask:0xf bank_mask:0xf")
    a("v_sub_f32 v8, v8, v9")
    a("v_mul_f32 v8, 0x3fb8aa3b, v8")
    a("v_exp_f32 v8, v8")
    a("s_nop 0")
    a("v_mov_b32 v9, v8")
    for sh in (8, 4, 2, 1):
        a("s_nop 1")
        a(f"v_add_f32_dpp v9, v9, v9 row_ror:{sh} row_mask:0xf bank_mask:0xf")
    a("v_rcp_f32 v9, v9")
    a("s_nop 0")
    a("v_mul_f32 v8, v8, v9")
    a("v_cvt_pk_bf16_f32 v8, v8, v8")
    a("v_lshlrev_b32 v8, 16, v8")
    a("v_lshlrev_b32 v6, 2, v4")
    a("s_mov_b64 exec, 0xffff")
    a(f"global_store_dword v6, v8, s[54:55] offset:{C_P} sc1")
    a("s_branch L_fin")
    a.label("L_vend")
    a(f"s_mov_b32 s36, {P['SPIN']}")
    a.label("L_pchk")
    a("s_waitcnt vmcnt(0)")
    a(f"v_cmp_eq_u32 vcc, -1, v{AUX}")
    a(f"v_cmp_eq_u32 s[48:49], -1, v{AUX+1}")
    a("s_or_b64 vcc, vcc, s[48:49]")
    a(f"v_cmp_eq_u32 s[48:49], -1, v{AUX+2}")
    a("s_or_b64 vcc, vcc, s[48:49]")
    a(f"v_cmp_eq_u32 s[48:49], -1, v{AUX+3}")
    a("s_or_b64 vcc, vcc, s[48:49]")
    a("s_cbranch_vccz L_pok")
    a("s_sub_u32 s36, s36, 1")
    a("s_cbranch_scc1 L_pok")
    a("s_sleep 8")
    a(f"buffer_load_dwordx4 v[{AUX}:{AUX+3}], v{vAuxOff}, s[64:67], 0 offen sc1")
    a("s_branch L_pchk")
    a.label("L_pok")
    if STAMP:
        a("s_memrealtime s[42:43]")
        a("s_waitcnt lgkmcnt(0)")
        a("v_mov_b32 v6, s42")
        a("v_mov_b32 v7, 100")
        a("s_mov_b64 exec, 1")
        a("ds_max_u32 v7, v6")
        a("s_mov_b64 exec, -1")
    O = 8
    for dd in range(8):
        a(f"v_mul_f32 v{O+dd}, v{AUX}, v{acc+4*dd}")
    for i in range(1, 4):
        for dd in range(8):
            a(f"v_fmac_f32 v{O+dd}, v{AUX+i}, v{acc+4*dd+i}")
    a("s_nop 1")
    a(f"v_permlane32_swap_b32 v{O+0}, v{O+4}")
    a(f"v_permlane32_swap_b32 v{O+2}, v{O+6}")
    a(f"v_permlane32_swap_b32 v{O+1}, v{O+5}")
    a(f"v_permlane32_swap_b32 v{O+3}, v{O+7}")
    a("s_nop 1")
    a(f"v_add_f32 v{O+0}, v{O+0}, v{O+4}")
    a(f"v_add_f32 v{O+2}, v{O+2}, v{O+6}")
    a(f"v_add_f32 v{O+1}, v{O+1}, v{O+5}")
    a(f"v_add_f32 v{O+3}, v{O+3}, v{O+7}")
    a("s_nop 1")
    a(f"v_permlane16_swap_b32 v{O+0}, v{O+2}")
    a(f"v_permlane16_swap_b32 v{O+1}, v{O+3}")
    a("s_nop 1")
    a(f"v_add_f32 v{O+0}, v{O+0}, v{O+2}")
    a(f"v_add_f32 v{O+1}, v{O+1}, v{O+3}")
    a("v_lshlrev_b32 v6, 3, v0")
    a("s_lshl_b32 s36, s34, 9")
    a("v_add_u32 v7, s36, v6")
    a(f"ds_write_b64 v7, v[{O}:{O+1}] offset:{L_OL}")
    a("s_waitcnt lgkmcnt(0)")
    a("s_barrier")
    if STAMP:
        a("s_memrealtime s[44:45]")
    a(f"s_cmp_lg_u32 s3, {WT}")
    a("s_cbranch_scc1 L_fin")
    for w in range(WT):
        a(f"ds_read_b64 v[{10+2*w}:{11+2*w}], v6 offset:{L_OL + 512*w}")
    for w in range(WT):
        a(f"s_waitcnt lgkmcnt({WT-1-w})")
        if w == 0:
            a("v_mov_b32 v8, v10")
            a("v_mov_b32 v9, v11")
        else:
            a(f"v_add_f32 v8, v8, v{10+2*w}")
            a(f"v_add_f32 v9, v9, v{11+2*w}")
    a("s_cmp_eq_u32 s30, 0")
    a("s_cbranch_scc1 L_final")
    a("v_mov_b32 v10, 0x7fc00000")
    a("v_cmp_eq_u32 vcc, -1, v8")
    a("v_cmp_eq_u32 s[48:49], -1, v9")
    a("s_lshl_b32 s36, s30, 9")
    a("v_add_u32 v6, s36, v6")
    a("v_cndmask_b32 v8, v8, v10, vcc")
    a("v_cndmask_b32 v9, v9, v10, s[48:49]")
    a(f"global_store_dwordx2 v6, v[8:9], s[54:55] offset:{C_O} sc1")
    a("s_branch L_fin")
    a.label("L_final")
    a(f"v_add_u32 v6, {C_O}, v6")
    a(f"s_mov_b32 s36, {P['SPIN']}")
    a.label("L_opoll")
    for x in range(1, NX):
        a(f"global_load_dwordx2 v[{10+2*x}:{11+2*x}], v6, s[54:55] offset:{x*512} sc1")
    a("s_waitcnt vmcnt(0)")
    a(f"v_cmp_eq_u32 vcc, -1, v12")
    for r in range(13, 10 + 2 * NX):
        a(f"v_cmp_eq_u32 s[48:49], -1, v{r}")
        a("s_or_b64 vcc, vcc, s[48:49]")
    a("s_cbranch_vccz L_ook")
    a("s_sub_u32 s36, s36, 1")
    a("s_cbranch_scc1 L_ook")
    a("s_sleep 2")
    a("s_branch L_opoll")
    a.label("L_ook")
    for x in range(1, NX):
        a(f"v_add_f32 v8, v8, v{10+2*x}")
        a(f"v_add_f32 v9, v9, v{11+2*x}")
    a("v_cvt_pk_bf16_f32 v8, v8, v9")
    a("s_lshl_b32 s36, s32, 8")
    a("s_add_u32 s12, s60, s36")
    a("s_addc_u32 s13, s61, 0")
    a("s_and_b32 s13, s13, 0xffff")
    a("s_mov_b32 s14, 256")
    a("s_mov_b32 s15, 0x20000")
    a("v_lshlrev_b32 v6, 4, v4")
    a("v_lshl_add_u32 v6, v5, 2, v6")
    a("buffer_store_dword v8, v6, s[12:15], 0 offen")
    a.label("L_fin")
    if STAMP:
        a(f"s_cmp_lg_u32 s3, {WT}")
        a("s_cbranch_scc1 L_done")
        a("s_waitcnt vmcnt(0)")
        a("s_memrealtime s[46:47]")
        a("s_getreg_b32 s37, hwreg(HW_REG_XCC_ID)")
        a("s_waitcnt lgkmcnt(0)")
        a("s_lshl_b32 s36, s2, 5")
        a("s_add_u32 s36, s36, 0x10000000")
        a("s_add_u32 s8, s28, s36")
        a("s_addc_u32 s9, s29, 0")
        a("s_and_b32 s9, s9, 0xffff")
        a("s_mov_b32 s10, 32")
        a("s_mov_b32 s11, 0x20000")
        a("v_mov_b32 v9, 96")
        a("ds_read_b64 v[10:11], v9")
        a("v_mov_b32 v4, s40")
        a("v_mov_b32 v6, s44")
        a("v_mov_b32 v7, s46")
        a("v_mov_b32 v8, s37")
        a("s_waitcnt lgkmcnt(0)")
        a("v_mov_b32 v5, v10")
        a("v_mov_b32 v9, v11")
        if STAMP == 2:
            a("v_mov_b32 v5, s68")
            a("v_mov_b32 v6, s72")
            a("v_mov_b32 v7, s70")
            a("v_mov_b32 v9, 0")
        a("buffer_store_dword v9, v12, s[8:11], 0 offen offset:20") if False else None
        a("v_mov_b32 v12, 0")
        a("s_mov_b64 exec, 1")
        a("buffer_store_dwordx4 v[4:7], v12, s[8:11], 0 offen")
        a("buffer_store_dwordx2 v[8:9], v12, s[8:11], 0 offen offset:16")
    a.label("L_done")
    a("s_endpgm")
    lds = P["LDS"]
    hdr = HDR + f"; @launch grid=({NWG},1,1) block=({WPB*64},1,1) lds={lds}\n"
    return hdr + '.amdgcn_target "amdgcn-amd-amdhsa--gfx950"\n.text\n' + a.text() + desc(KN, nv, 96)


DEF = dict(WPB=16, NX=8, NB=2, SCHED="8x8,8x4,8x2,16x1", KFLAGS="nt", SPIN=100000, LDS=98304, RETRY=24)

if __name__ == "__main__":
    P = dict(DEF)
    out = sys.argv[1]
    for kv in sys.argv[2:]:
        k, v = kv.split("=")
        try:
            v = int(v)
        except ValueError:
            v = v.replace("+", " ")
        P[k] = v
    open(out, "w").write(gen(P))
    print("wrote", out, P)
```

```python
import sys, re
from gen2 import A, desc, HDR, KN, ROW_E


WS_CTL = 0
C_POOL = 0
C_KARR = 512
C_P = 1024
C_KS = 1536
C_O = 2048
L_KC = 16
L_SK = 32
L_OL = 128


def gen(P):
    a = A()
    WPB, NX, NB = P["WPB"], P["NX"], P["NB"]
    sched = [tuple(int(v) for v in seg.split("x")) for seg in P["SCHED"].split(",")]
    S = sum(c * z for c, z in sched)
    NT = sum(c for c, z in sched)
    kfl = " " + P["KFLAGS"] if P["KFLAGS"] else ""
    WT = WPB // 2
    NR = 65536 // NX
    TW = NR // 32
    NP = TW - S
    NPOOL = NX * S
    NWG = 32 * NX
    loglx = NX.bit_length() - 1
    L = 9
    vOffK, vOffE = 1, 2
    base = 4
    buf = [base + 36 * b for b in range(NB)]
    tmp = base + 36 * NB
    acc = tmp + 8
    nv = acc + 32
    vT, vT1, vCnt, vAuxOff = nv, nv + 1, nv + 2, nv + 3
    assert vT % 2 == 0
    vOne64 = nv + 4
    AUX = nv + 6
    nv += 10
    STAMP = P.get("STAMP", 0)
    FW = 1 if P.get("ILVW") else WT
    assert NX == 8
    assert NP >= NB * WT + WT

    a.raw(f".globl {KN}\n.p2align 8\n.type {KN},@function\n{KN}:")
    a(f"s_cmp_ge_u32 s2, {NWG}")
    a("s_cbranch_scc1 L_done")
    a("s_load_dwordx4 s[4:7], s[0:1], 8")
    a("s_load_dwordx4 s[24:27], s[0:1], 24")
    if STAMP:
        a("s_memrealtime s[40:41]")
    a("v_lshrrev_b32 v3, 6, v0")
    a("v_and_b32 v0, 63, v0")
    a("v_readfirstlane_b32 s3, v3")
    a("v_lshrrev_b32 v3, 4, v0")
    a("v_and_b32 v2, 15, v0")
    a("v_lshlrev_b32 v1, 11, v3")
    a("v_lshl_add_u32 v1, v2, 4, v1")
    a("v_lshlrev_b32 v2, 17, v2")
    a("v_lshl_add_u32 v2, v3, 4, v2")
    a(f"s_and_b32 s30, s2, {NX-1}")
    a(f"s_lshr_b32 s32, s2, {loglx}")
    if P.get("ILVW"):
        a("s_and_b32 s33, s3, 1")
        a("s_lshr_b32 s34, s3, 1")
    else:
        a(f"s_lshr_b32 s33, s3, {WT.bit_length()-1}")
        a(f"s_and_b32 s34, s3, {WT-1}")
    a("s_lshl_b32 s35, s32, 24")
    a(f"s_mul_i32 s18, s30, {TW}")
    a("s_mov_b32 s10, 0x1000000")
    a("s_mov_b32 s11, 0x20000")
    a("s_mov_b32 s14, 0x200000")
    a("s_mov_b32 s15, 0x20000")
    ROT = P.get("ROT", 0)
    if ROT:
        a(f"s_mul_i32 s31, s32, {ROT}")
        if P.get("ROTX"):
            a(f"s_mul_i32 s36, s30, {P['ROTX']}")
            a("s_add_u32 s31, s31, s36")
        for _ in range(2):
            a(f"s_cmp_ge_u32 s31, {NP}")
            a(f"s_cselect_b32 s36, {NP}, 0")
            a("s_sub_u32 s31, s31, s36")
        a("s_add_u32 s19, s31, s34")
        a(f"s_cmp_ge_u32 s19, {NP}")
        a(f"s_cselect_b32 s36, {NP}, 0")
        a("s_sub_u32 s19, s19, s36")
        a("s_add_u32 s19, s19, s18")
        assert NB == 2
    else:
        a("s_add_u32 s19, s18, s34")
    a("s_lshl_b32 s16, s19, 13")
    a("s_lshl_b32 s17, s19, 6")
    a("s_cmp_eq_u32 s33, 0")
    a("s_waitcnt lgkmcnt(0)")
    if STAMP == 2:
        a("s_memrealtime s[68:69]")
    a("s_cselect_b32 s8, s4, s6")
    a("s_cselect_b32 s9, s5, s7")
    a("s_cselect_b32 s12, s24, s26")
    a("s_cselect_b32 s13, s25, s27")
    a("s_add_u32 s8, s8, s35")
    a("s_addc_u32 s9, s9, 0")
    a("s_and_b32 s9, s9, 0xffff")
    a("s_and_b32 s13, s13, 0xffff")

    def loads(b):
        r = buf[b]
        for j in range(8):
            a(f"buffer_load_dwordx4 v[{r+4*j}:{r+4*j+3}], v{vOffK}, s[8:11], s16 offen offset:{j*256}{kfl}")
        a(f"buffer_load_dwordx4 v[{r+32}:{r+35}], v{vOffE}, s[12:15], s17 offen")

    def compute(b):
        r = buf[b]
        def perm(dd):
            i, h = dd >> 1, dd & 1
            t = tmp + 4 * (dd & 1)
            for p in range(4):
                a(f"v_perm_b32 v{t+p}, v{r+4*(2*p+1)+i}, v{r+4*(2*p)+i}, s{20+h}")
        def mfma(dd):
            t = tmp + 4 * (dd & 1)
            a(f"v_mfma_f32_16x16x32_bf16 v[{acc+4*dd}:{acc+4*dd+3}], v[{r+32}:{r+35}], v[{t}:{t+3}], v[{acc+4*dd}:{acc+4*dd+3}]")
        perm(0); perm(1)
        for dd in range(7):
            mfma(dd)
            if dd + 2 < 8:
                perm(dd + 2)
        a("s_nop 1")
        mfma(7)

    PRE = P.get("PRE", 0)
    NPRO = NB if PRE else NB - 1
    def prologue():
        for b in range(NPRO):
            loads(b)
            if b + 1 < NPRO:
                a(f"s_add_u32 s16, s16, {WT*8192}")
                a(f"s_add_u32 s17, s17, {WT*64}")
    VLATE = P.get("VLATE", 0)
    if VLATE:
        a("s_cmp_lg_u32 s33, 0")
        a("s_cbranch_scc1 L_nopro")
        prologue()
        a.label("L_nopro")
    else:
        prologue()
    if STAMP == 3:
        a("s_memrealtime s[68:69]")
    a("s_load_dwordx2 s[56:57], s[0:1], 0")
    a("s_load_dwordx4 s[60:63], s[0:1], 40")
    a("s_load_dwordx2 s[28:29], s[0:1], 56")
    a("s_mov_b32 s20, 0x05040100")
    a("s_mov_b32 s21, 0x07060302")
    a("s_cmp_lg_u32 s3, 0")
    a("s_cbranch_scc1 L_noinit")
    a(f"v_lshlrev_b32 v3, 4, v0")
    for i in range(4):
        a(f"v_mov_b32 v{tmp+i}, 0")
    a(f"ds_write_b128 v3, v[{tmp}:{tmp+3}]")
    a(f"v_mov_b32 v{tmp}, {NPRO*WT}")
    a(f"v_mov_b32 v{tmp+2}, {NPRO*WT}")
    a("v_mov_b32 v3, 0")
    a(f"ds_write_b128 v3, v[{tmp}:{tmp+3}]")
    a.label("L_noinit")
    a(f"s_lshl_b32 s36, s33, 3")
    a(f"v_mov_b32 v{vCnt}, s36")
    a(f"v_mov_b32 v{vOne64}, 1")
    a(f"v_mov_b32 v{vOne64+1}, 0")
    a(f"v_and_b32 v{vAuxOff}, 15, v0")
    a(f"v_lshrrev_b32 v3, 4, v0")
    a("s_cmp_eq_u32 s33, 0")
    a("s_cselect_b64 vcc, -1, 0")
    a(f"v_cndmask_b32 v{vAuxOff}, v3, v{vAuxOff}, vcc")
    a(f"v_lshlrev_b32 v{vAuxOff}, 4, v{vAuxOff}")
    for i in range(32):
        a(f"v_mov_b32 v{acc+i}, 0")
    a("s_waitcnt lgkmcnt(0)")
    a("s_lshl_b32 s36, s32, 13")
    a("s_add_u32 s54, s28, s36")
    a("s_addc_u32 s55, s29, 0")
    a("s_lshl_b32 s36, s33, 8")
    a("s_add_u32 s52, s54, s36")
    a("s_addc_u32 s53, s55, 0")
    a("s_lshl_b32 s36, s32, 8")
    a("s_add_u32 s36, s56, s36")
    a("s_addc_u32 s37, s57, 0")
    a(f"s_add_u32 s38, s54, {C_P}")
    a("s_addc_u32 s39, s55, 0")
    a("s_cmp_eq_u32 s33, 0")
    a("s_cselect_b32 s64, s36, s38")
    a("s_cselect_b32 s65, s37, s39")
    a("s_cselect_b32 s66, 256, 64")
    a("s_and_b32 s65, s65, 0xffff")
    a("s_mov_b32 s67, 0x20000")
    a("s_barrier")
    if VLATE:
        a("s_cmp_eq_u32 s33, 0")
        a("s_cbranch_scc1 L_nopro2")
        prologue()
        a.label("L_nopro2")
    a("s_cmp_lg_u32 s3, 0")
    a("s_cbranch_scc1 L_loop0")
    a("s_lshl_b32 s36, s32, 3")
    a("s_add_u32 s50, s62, s36")
    a("s_addc_u32 s51, s63, 0")
    a("s_mov_b32 s36, 1")
    a("s_atomic_or s36, s[50:51], 0x0 glc")
    a("s_waitcnt lgkmcnt(0)")
    a("s_and_b32 s37, s36, 1")
    a("s_cbranch_scc1 L_poll")
    a(f"v_mov_b32 v{tmp}, 0")
    a(f"v_lshrrev_b32 v{tmp+1}, 3, v0")
    a(f"v_lshlrev_b32 v{tmp+1}, 8, v{tmp+1}")
    a(f"v_and_b32 v{tmp+2}, 7, v0")
    a(f"v_lshl_add_u32 v{tmp+1}, v{tmp+2}, 2, v{tmp+1}")
    for i in range(4):
        a(f"v_mov_b32 v{tmp+4+i}, -1")
    a(f"v_lshlrev_b32 v{tmp+2}, 4, v0")
    a(f"v_lshlrev_b32 v{tmp+3}, 2, v0")
    a(f"v_add_u32 v{vT}, {C_O}, v{tmp+2}")
    for i in range(4):
        a(f"global_store_dwordx4 v{vT}, v[{tmp+4}:{tmp+7}], s[54:55] offset:{i*1024} sc1")
    a("s_mov_b64 exec, 0xffff")
    a(f"global_store_dword v{tmp+3}, v{tmp+4}, s[54:55] offset:{C_P} sc1")
    a("s_mov_b64 exec, 0x1ffff")
    a(f"global_store_dword v{tmp+1}, v{tmp}, s[54:55] sc1")
    a("s_mov_b64 exec, -1")
    a("s_waitcnt vmcnt(0)")
    a("s_mov_b32 s36, 2")
    a("s_atomic_or s36, s[50:51], 0x0 glc")
    a("s_waitcnt lgkmcnt(0)")
    a("s_branch L_setready")
    a.label("L_poll")
    a(f"s_mov_b32 s38, {P['SPIN']}")
    a.label("L_poll1")
    a("s_and_b32 s37, s36, 2")
    a("s_cbranch_scc1 L_setready")
    a("s_sub_u32 s38, s38, 1")
    a("s_cbranch_scc1 L_setready")
    a("s_sleep 4")
    a("s_mov_b32 s36, 0")
    a("s_atomic_or s36, s[50:51], 0x0 glc")
    a("s_waitcnt lgkmcnt(0)")
    a("s_branch L_poll1")
    a.label("L_setready")
    a(f"v_mov_b32 v{tmp}, 0")
    a(f"v_mov_b32 v{tmp+2}, 0")
    a(f"v_mov_b32 v{tmp+3}, 1")
    a("s_mov_b64 exec, 1")
    a(f"ds_add_u64 v{tmp}, v[{tmp+2}:{tmp+3}]")
    a(f"ds_add_u64 v{tmp}, v[{tmp+2}:{tmp+3}] offset:8")
    a("s_mov_b64 exec, -1")
    a.label("L_loop0")
    if P.get("KPRIO"):
        a("s_cmp_lg_u32 s33, 0")
        a("s_cbranch_scc1 L_noprio")
        a(f"s_setprio {P['KPRIO']}")
        a.label("L_noprio")
    if P.get("PREWARM"):
        a("s_cmp_lg_u32 s34, 1")
        a("s_cbranch_scc1 L_nowarm")
        a(f"v_lshlrev_b32 v{tmp}, 21, v0")
        a(f"v_add_u32 v{tmp}, {NP*8192 + 4096}, v{tmp}")
        a("s_mov_b64 exec, 0xff")
        a(f"buffer_load_dword v{tmp+1}, v{tmp}, s[8:11], 0 offen nt")
        a("s_mov_b64 exec, -1")
        a("s_waitcnt vmcnt(0)")
        a.label("L_nowarm")
    if STAMP == 3:
        a("s_memrealtime s[72:73]")
        a("s_waitcnt vmcnt(0)")
        a("s_memrealtime s[70:71]")
        a("s_waitcnt lgkmcnt(0)")
        a(f"s_mul_i32 s36, s2, {WPB}")
        a("s_add_u32 s36, s36, s3")
        a("s_lshl_b32 s36, s36, 4")
        a("s_add_u32 s36, s36, 0x11000000")
        a("s_add_u32 s72, s28, s36")
        a("s_addc_u32 s73, s29, 0")
        a(f"v_mov_b32 v{tmp}, s40")
        a(f"v_mov_b32 v{tmp+1}, s68")
        a(f"v_mov_b32 v{tmp+2}, s70")
        a(f"v_mov_b32 v{tmp+3}, 0")
        a(f"v_mov_b32 v{tmp+4}, 0")
        a("s_mov_b64 exec, 1")
        a(f"global_store_dwordx4 v{tmp+4}, v[{tmp}:{tmp+3}], s[72:73]")
        a("s_mov_b64 exec, -1")
        a("s_waitcnt vmcnt(0)")
    if STAMP == 2:
        a("s_memrealtime s[72:73]")
        a("s_waitcnt vmcnt(0)")
        a("s_memrealtime s[70:71]")

    T4 = STAMP == 4
    stile = [74, 75, 92, 93, 94]
    def t4_after_wait(b):
        if T4:
            a("s_memrealtime s[68:69]")
            a(f"s_mov_b32 s70, s{stile[b]}")
    def t4_store():
        if T4:
            a("s_lshl_b32 s71, s70, 3")
            a("s_mov_b64 exec, 1")
            a(f"v_mov_b32 v{vT}, s68")
            a(f"v_mov_b32 v{vT1}, s69")
            a(f"buffer_store_dwordx2 v[{vT}:{vT1}], v{nvx}, s[76:79], s71 offen")
            a("s_mov_b64 exec, -1")
    def t4_set(nb):
        if T4:
            a(f"s_lshr_b32 s{stile[nb]}, s16, 13")
    if T4:
        nvx = nv
        nv += 1
        a(f"v_mov_b32 v{nvx}, 0")
        a("s_mov_b32 s70, 0x1000000")
        for b_ in range(NPRO):
            a(f"s_add_u32 s{stile[b_]}, s18, s34")
            if b_: a(f"s_add_u32 s{stile[b_]}, s{stile[b_]}, {b_*WT}")
        a("s_lshl_b32 s36, s32, 1")
        a("s_add_u32 s36, s36, s33")
        a("s_lshl_b32 s36, s36, 14")
        a("s_add_u32 s36, s36, 0x20000000")
        a("s_add_u32 s76, s28, s36")
        a("s_addc_u32 s77, s29, 0")
        a("s_and_b32 s77, s77, 0xffff")
        a("s_mov_b32 s78, 16384")
        a("s_mov_b32 s79, 0x20000")

    def grab_lds():
        a("s_mov_b64 exec, 1")
        a(f"ds_add_rtn_u64 v[{vT}:{vT1}], v{vCnt}, v[{vOne64}:{vOne64+1}]")
        a("s_mov_b64 exec, -1")

    def grab_pool():
        a("s_mov_b32 s23, 1")
        a("s_atomic_add s23, s[52:53], s58 glc")

    if PRE:
        a("s_branch L_p1m_0")
    for b in range(NB):
        nb = (b + NB - 1) % NB
        a.label(f"L_p1_{b}")
        grab_lds()
        a("s_waitcnt lgkmcnt(0)")
        a(f"v_readfirstlane_b32 s19, v{vT}")
        a(f"v_readfirstlane_b32 s22, v{vT1}")
        a("s_nop 2")
        if ROT:
            a("s_add_u32 s36, s19, s31")
            a(f"s_cmp_ge_u32 s36, {NP}")
            a(f"s_cselect_b32 s37, {NP}, 0")
            a("s_sub_u32 s36, s36, s37")
            a("s_add_u32 s36, s36, s18")
        else:
            a("s_add_u32 s36, s18, s19")
        a("s_lshl_b32 s16, s36, 13")
        a("s_lshl_b32 s17, s36, 6")
        a(f"s_cmp_ge_u32 s19, {NP-WT}")
        a(f"s_cbranch_scc1 L_sw_{b}")
        t4_store()
        t4_set(nb)
        loads(nb)
        if b == 0:
            a.label("L_p1m_0")
        a(f"s_waitcnt vmcnt({(L+1)*(NB-1)-1 if T4 else L*(NB-1)})")
        t4_after_wait(b)
        compute(b)
    a("s_branch L_p1_0")
    for b in range(NB):
        a.label(f"L_sw_{b}")
        a("s_cmp_lg_u32 s22, 0")
        a(f"s_cbranch_scc1 L_swok_{b}")
        a.label(f"L_swspin_{b}")
        a("s_sleep 4")
        a(f"ds_read_b64 v[{vT}:{vT1}], v{vCnt}")
        a("s_waitcnt lgkmcnt(0)")
        a(f"v_readfirstlane_b32 s22, v{vT1}")
        a("s_nop 2")
        a("s_cmp_eq_u32 s22, 0")
        a(f"s_cbranch_scc1 L_swspin_{b}")
        a.label(f"L_swok_{b}")
        a("s_lshl_b32 s58, s30, 2")
        a(f"s_add_u32 s59, s18, {NP}")
        a(f"s_mov_b32 s80, {P['RETRY']}")
        a("s_mov_b32 s82, 0")
        grab_pool()
        a(f"s_branch L_p2m_{b}")
    for b in range(NB):
        nb = (b + NB - 1) % NB
        a.label(f"L_p2_{b}")
        a("s_cmp_lg_u32 s82, 0")
        a(f"s_cbranch_scc1 L_p2c_{b}")
        a("s_waitcnt lgkmcnt(0)")
        a(f"s_cmp_ge_u32 s23, {NT}")
        a(f"s_cbranch_scc1 L_st_{b}")
        J = 0; O = 0
        if P.get("ILVT", 1):
            for k, (c, z) in enumerate(sched):
                off = (O - J) & 0xffffffff
                if k == 0:
                    a(f"s_mov_b32 s82, {z}")
                    a(f"s_mov_b32 s37, {off}")
                    a(f"s_mov_b32 s83, {c}")
                else:
                    a(f"s_cmp_ge_u32 s23, {J}")
                    a(f"s_cselect_b32 s82, {z}, s82")
                    a(f"s_cselect_b32 s37, {off}, s37")
                    if c != sched[k-1][0] and z > 1:
                        a(f"s_cselect_b32 s83, {c}, s83")
                J += c; O += c * z
            a("s_add_u32 s81, s23, s37")
            a("s_add_u32 s81, s81, s59")
        else:
            for k, (c, z) in enumerate(sched):
                lz = z.bit_length() - 1
                assert 1 << lz == z
                off = (O - (J << lz)) & 0xffffffff
                if k == 0:
                    a(f"s_mov_b32 s36, {lz}")
                    a(f"s_mov_b32 s37, {off}")
                else:
                    a(f"s_cmp_ge_u32 s23, {J}")
                    a(f"s_cselect_b32 s36, {lz}, s36")
                    a(f"s_cselect_b32 s37, {off}, s37")
                J += c; O += c * z
            a("s_lshl_b32 s81, s23, s36")
            a("s_add_u32 s81, s81, s37")
            a("s_add_u32 s81, s81, s59")
            a("s_lshl_b32 s82, 1, s36")
            a("s_mov_b32 s83, 1")
        EARLY = P.get("EARLY", 0)
        if EARLY == 1:
            grab_pool()
        if EARLY == 2:
            a("s_cmp_lg_u32 s82, 1")
            a(f"s_cbranch_scc1 L_p2c_{b}")
            grab_pool()
        a.label(f"L_p2c_{b}")
        a("s_lshl_b32 s16, s81, 13")
        a("s_lshl_b32 s17, s81, 6")
        a("s_add_u32 s81, s81, s83")
        a("s_sub_u32 s82, s82, 1")
        if EARLY == 0:
            a("s_cmp_lg_u32 s82, 0")
            a(f"s_cbranch_scc1 L_p2m_{b}")
            grab_pool()
        if EARLY == 2:
            a("s_cmp_lg_u32 s82, 1")
            a(f"s_cbranch_scc1 L_p2m_{b}")
            grab_pool()
        a.label(f"L_p2m_{b}")
        if T4:
            a("s_waitcnt lgkmcnt(0)") if False else None
        t4_store()
        t4_set(nb)
        loads(nb)
        a(f"s_waitcnt vmcnt({(L+1)*(NB-1)-1 if T4 else L*(NB-1)})")
        t4_after_wait(b)
        compute(b)
    a("s_branch L_p2_0")
    for b in range(NB):
        a.label(f"L_st_{b}")
        a("s_cmp_eq_u32 s80, 0")
        a(f"s_cbranch_scc1 L_dr_{b}")
        a("s_sub_u32 s80, s80, 1")
        a("s_load_dwordx8 s[84:91], s[52:53], 0x0 glc")
        a("s_waitcnt lgkmcnt(0)")
        a("s_mov_b32 s36, s84")
        a("s_mov_b32 s37, 0")
        for x in range(1, NX):
            a(f"s_cmp_lt_u32 s{84+x}, s36")
            a(f"s_cselect_b32 s36, s{84+x}, s36")
            a(f"s_cselect_b32 s37, {x}, s37")
        a(f"s_cmp_ge_u32 s36, {NT}")
        a(f"s_cbranch_scc1 L_dr_{b}")
        a("s_lshl_b32 s58, s37, 2")
        a(f"s_mul_i32 s59, s37, {TW}")
        a(f"s_add_u32 s59, s59, {NP}")
        grab_pool()
        a(f"s_branch L_p2_{b}")
    for b in range(NB):
        a.label(f"L_dr_{b}")
        a(f"buffer_load_dwordx4 v[{AUX}:{AUX+3}], v{vAuxOff}, s[64:67], 0 offen sc1")
        for k in range(NB - 1):
            a(f"s_waitcnt vmcnt({L*(NB-2-k)+1})")
            compute((b + k) % NB)
        if b + 1 < NB:
            a("s_branch L_loopdone")
    a.label("L_loopdone")
    if STAMP:
        a("s_memrealtime s[42:43]")
        a("s_waitcnt lgkmcnt(0)")
        a("v_mov_b32 v4, s42")
        a("v_mov_b32 v5, 96")
        a("s_mov_b64 exec, 1")
        a("ds_max_u32 v5, v4")
        a("s_mov_b64 exec, -1")
    a("v_and_b32 v4, 15, v0")
    a("v_lshrrev_b32 v5, 4, v0")
    a("s_cmp_lg_u32 s33, 0")
    a("s_cbranch_scc1 L_vend")
    a("s_waitcnt vmcnt(0)")
    Q = 8
    for j in range(4):
        a(f"v_lshlrev_b32 v{Q+2*j}, 16, v{AUX+j}")
        a(f"v_and_b32 v{Q+2*j+1}, 0xffff0000, v{AUX+j}")
    T = 16
    for i in range(4):
        a(f"v_mul_f32 v{T+i}, v{Q}, v{acc+i}")
    for dd in range(1, 8):
        for i in range(4):
            a(f"v_fmac_f32 v{T+i}, v{Q+dd}, v{acc+4*dd+i}")
    for sh in (8, 4, 2, 1):
        a("s_nop 1")
        for i in range(4):
            a(f"v_add_f32_dpp v{T+i}, v{T+i}, v{T+i} row_ror:{sh} row_mask:0xf bank_mask:0xf")
    a("v_lshlrev_b32 v6, 4, v5")
    a("v_cmp_eq_u32 vcc, 0, v4")
    a("s_and_saveexec_b64 s[48:49], vcc")
    for i in range(4):
        a(f"ds_add_f32 v6, v{T+i} offset:{L_SK + 4*i}")
    a("s_mov_b64 exec, 1")
    a(f"v_mov_b32 v6, {L_KC}")
    a("v_mov_b32 v7, 1")
    a("ds_add_rtn_u32 v7, v6, v7")
    a("s_mov_b64 exec, -1")
    a("s_waitcnt lgkmcnt(0)")
    a("v_readfirstlane_b32 s36, v7")
    a("s_nop 3")
    a(f"s_cmp_lg_u32 s36, {WT-1}")
    a("s_cbranch_scc1 L_fin")
    a("v_lshlrev_b32 v6, 2, v4")
    a(f"ds_read_b32 v7, v6 offset:{L_SK}")
    a("s_lshl_b32 s36, s30, 6")
    a("v_add_u32 v6, s36, v6")
    a("s_waitcnt lgkmcnt(0)")
    a("s_mov_b64 exec, 0xffff")
    a(f"global_store_dword v6, v7, s[54:55] offset:{C_KS} sc1")
    a("s_mov_b64 exec, -1")
    a("s_waitcnt vmcnt(0)")
    a("s_mov_b32 s36, 1")
    a(f"s_atomic_add s36, s[54:55], {C_KARR} glc")
    a("s_waitcnt lgkmcnt(0)")
    a(f"s_cmp_lg_u32 s36, {NX-1}")
    a("s_cbranch_scc1 L_fin")
    a("v_lshlrev_b32 v6, 2, v0")
    a(f"global_load_dword v8, v6, s[54:55] offset:{C_KS} sc1")
    a(f"global_load_dword v9, v6, s[54:55] offset:{C_KS+256} sc1")
    a("v_xor_b32 v6, 16, v0")
    a("v_lshlrev_b32 v6, 2, v6")
    a("v_xor_b32 v7, 32, v0")
    a("v_lshlrev_b32 v7, 2, v7")
    a("s_waitcnt vmcnt(0)")
    a("v_add_f32 v8, v8, v9")
    a("ds_bpermute_b32 v9, v6, v8")
    a("s_waitcnt lgkmcnt(0)")
    a("v_add_f32 v8, v8, v9")
    a("ds_bpermute_b32 v9, v7, v8")
    a("s_waitcnt lgkmcnt(0)")
    a("v_add_f32 v8, v8, v9")
    a("v_cvt_pk_bf16_f32 v8, v8, v8")
    a("v_lshlrev_b32 v8, 16, v8")
    a("v_mul_f32 v8, 0x3db504f3, v8")
    a("v_cvt_pk_bf16_f32 v8, v8, v8")
    a("v_lshlrev_b32 v8, 16, v8")
    a("v_mov_b32 v9, v8")
    for sh in (8, 4, 2, 1):
        a("s_nop 1")
        a(f"v_max_f32_dpp v9, v9, v9 row_ror:{sh} row_mask:0xf bank_mask:0xf")
    a("v_sub_f32 v8, v8, v9")
    a("v_mul_f32 v8, 0x3fb8aa3b, v8")
    a("v_exp_f32 v8, v8")
    a("s_nop 0")
    a("v_mov_b32 v9, v8")
    for sh in (8, 4, 2, 1):
        a("s_nop 1")
        a(f"v_add_f32_dpp v9, v9, v9 row_ror:{sh} row_mask:0xf bank_mask:0xf")
    a("v_rcp_f32 v9, v9")
    a("s_nop 0")
    a("v_mul_f32 v8, v8, v9")
    a("v_cvt_pk_bf16_f32 v8, v8, v8")
    a("v_lshlrev_b32 v8, 16, v8")
    a("v_lshlrev_b32 v6, 2, v4")
    a("s_mov_b64 exec, 0xffff")
    a(f"global_store_dword v6, v8, s[54:55] offset:{C_P} sc1")
    a("s_branch L_fin")
    a.label("L_vend")
    a(f"s_mov_b32 s36, {P['SPIN']}")
    a.label("L_pchk")
    a("s_waitcnt vmcnt(0)")
    a(f"v_cmp_eq_u32 vcc, -1, v{AUX}")
    a(f"v_cmp_eq_u32 s[48:49], -1, v{AUX+1}")
    a("s_or_b64 vcc, vcc, s[48:49]")
    a(f"v_cmp_eq_u32 s[48:49], -1, v{AUX+2}")
    a("s_or_b64 vcc, vcc, s[48:49]")
    a(f"v_cmp_eq_u32 s[48:49], -1, v{AUX+3}")
    a("s_or_b64 vcc, vcc, s[48:49]")
    a("s_cbranch_vccz L_pok")
    a("s_sub_u32 s36, s36, 1")
    a("s_cbranch_scc1 L_pok")
    a("s_sleep 8")
    a(f"buffer_load_dwordx4 v[{AUX}:{AUX+3}], v{vAuxOff}, s[64:67], 0 offen sc1")
    a("s_branch L_pchk")
    a.label("L_pok")
    if STAMP:
        a("s_memrealtime s[42:43]")
        a("s_waitcnt lgkmcnt(0)")
        a("v_mov_b32 v6, s42")
        a("v_mov_b32 v7, 100")
        a("s_mov_b64 exec, 1")
        a("ds_max_u32 v7, v6")
        a("s_mov_b64 exec, -1")
    O = 8
    for dd in range(8):
        a(f"v_mul_f32 v{O+dd}, v{AUX}, v{acc+4*dd}")
    for i in range(1, 4):
        for dd in range(8):
            a(f"v_fmac_f32 v{O+dd}, v{AUX+i}, v{acc+4*dd+i}")
    a("s_nop 1")
    a(f"v_permlane32_swap_b32 v{O+0}, v{O+4}")
    a(f"v_permlane32_swap_b32 v{O+2}, v{O+6}")
    a(f"v_permlane32_swap_b32 v{O+1}, v{O+5}")
    a(f"v_permlane32_swap_b32 v{O+3}, v{O+7}")
    a("s_nop 1")
    a(f"v_add_f32 v{O+0}, v{O+0}, v{O+4}")
    a(f"v_add_f32 v{O+2}, v{O+2}, v{O+6}")
    a(f"v_add_f32 v{O+1}, v{O+1}, v{O+5}")
    a(f"v_add_f32 v{O+3}, v{O+3}, v{O+7}")
    a("s_nop 1")
    a(f"v_permlane16_swap_b32 v{O+0}, v{O+2}")
    a(f"v_permlane16_swap_b32 v{O+1}, v{O+3}")
    a("s_nop 1")
    a(f"v_add_f32 v{O+0}, v{O+0}, v{O+2}")
    a(f"v_add_f32 v{O+1}, v{O+1}, v{O+3}")
    a("v_lshlrev_b32 v6, 3, v0")
    a("s_lshl_b32 s36, s34, 9")
    a("v_add_u32 v7, s36, v6")
    a(f"ds_write_b64 v7, v[{O}:{O+1}] offset:{L_OL}")
    a("s_waitcnt lgkmcnt(0)")
    a("s_barrier")
    if STAMP:
        a("s_memrealtime s[44:45]")
    a(f"s_cmp_lg_u32 s3, {FW}")
    a("s_cbranch_scc1 L_fin")
    for w in range(WT):
        a(f"ds_read_b64 v[{10+2*w}:{11+2*w}], v6 offset:{L_OL + 512*w}")
    for w in range(WT):
        a(f"s_waitcnt lgkmcnt({WT-1-w})")
        if w == 0:
            a("v_mov_b32 v8, v10")
            a("v_mov_b32 v9, v11")
        else:
            a(f"v_add_f32 v8, v8, v{10+2*w}")
            a(f"v_add_f32 v9, v9, v{11+2*w}")
    a("s_cmp_eq_u32 s30, 0")
    a("s_cbranch_scc1 L_final")
    a("v_mov_b32 v10, 0x7fc00000")
    a("v_cmp_eq_u32 vcc, -1, v8")
    a("v_cmp_eq_u32 s[48:49], -1, v9")
    a("s_lshl_b32 s36, s30, 9")
    a("v_add_u32 v6, s36, v6")
    a("v_cndmask_b32 v8, v8, v10, vcc")
    a("v_cndmask_b32 v9, v9, v10, s[48:49]")
    a(f"global_store_dwordx2 v6, v[8:9], s[54:55] offset:{C_O} sc1")
    a("s_branch L_fin")
    a.label("L_final")
    a(f"v_add_u32 v6, {C_O}, v6")
    a(f"s_mov_b32 s36, {P['SPIN']}")
    a.label("L_opoll")
    for x in range(1, NX):
        a(f"global_load_dwordx2 v[{10+2*x}:{11+2*x}], v6, s[54:55] offset:{x*512} sc1")
    a("s_waitcnt vmcnt(0)")
    a(f"v_cmp_eq_u32 vcc, -1, v12")
    for r in range(13, 10 + 2 * NX):
        a(f"v_cmp_eq_u32 s[48:49], -1, v{r}")
        a("s_or_b64 vcc, vcc, s[48:49]")
    a("s_cbranch_vccz L_ook")
    a("s_sub_u32 s36, s36, 1")
    a("s_cbranch_scc1 L_ook")
    a("s_sleep 2")
    a("s_branch L_opoll")
    a.label("L_ook")
    for x in range(1, NX):
        a(f"v_add_f32 v8, v8, v{10+2*x}")
        a(f"v_add_f32 v9, v9, v{11+2*x}")
    a("v_cvt_pk_bf16_f32 v8, v8, v9")
    a("s_lshl_b32 s36, s32, 8")
    a("s_add_u32 s12, s60, s36")
    a("s_addc_u32 s13, s61, 0")
    a("s_and_b32 s13, s13, 0xffff")
    a("s_mov_b32 s14, 256")
    a("s_mov_b32 s15, 0x20000")
    a("v_lshlrev_b32 v6, 4, v4")
    a("v_lshl_add_u32 v6, v5, 2, v6")
    a("buffer_store_dword v8, v6, s[12:15], 0 offen")
    a.label("L_fin")
    if STAMP:
        a(f"s_cmp_lg_u32 s3, {FW}")
        a("s_cbranch_scc1 L_done")
        a("s_waitcnt vmcnt(0)")
        a("s_memrealtime s[46:47]")
        a("s_getreg_b32 s37, hwreg(HW_REG_XCC_ID)")
        a("s_waitcnt lgkmcnt(0)")
        a("s_lshl_b32 s36, s2, 5")
        a("s_add_u32 s36, s36, 0x10000000")
        a("s_add_u32 s8, s28, s36")
        a("s_addc_u32 s9, s29, 0")
        a("s_and_b32 s9, s9, 0xffff")
        a("s_mov_b32 s10, 32")
        a("s_mov_b32 s11, 0x20000")
        a("v_mov_b32 v9, 96")
        a("ds_read_b64 v[10:11], v9")
        a("v_mov_b32 v4, s40")
        a("v_mov_b32 v6, s44")
        a("v_mov_b32 v7, s46")
        a("v_mov_b32 v8, s37")
        a("s_waitcnt lgkmcnt(0)")
        a("v_mov_b32 v5, v10")
        a("v_mov_b32 v9, v11")
        if STAMP == 2:
            a("v_mov_b32 v5, s68")
            a("v_mov_b32 v6, s72")
            a("v_mov_b32 v7, s70")
            a("v_mov_b32 v9, 0")
        a("buffer_store_dword v9, v12, s[8:11], 0 offen offset:20") if False else None
        a("v_mov_b32 v12, 0")
        a("s_mov_b64 exec, 1")
        a("buffer_store_dwordx4 v[4:7], v12, s[8:11], 0 offen")
        a("buffer_store_dwordx2 v[8:9], v12, s[8:11], 0 offen offset:16")
    a.label("L_done")
    a("s_endpgm")
    lds = P["LDS"]
    hdr = HDR + f"; @launch grid=({NWG},1,1) block=({WPB*64},1,1) lds={lds}\n"
    return hdr + '.amdgcn_target "amdgcn-amd-amdhsa--gfx950"\n.text\n' + a.text() + desc(KN, nv, 96)


DEF = dict(WPB=16, NX=8, NB=2, SCHED="8x8,8x4,8x2,16x1", KFLAGS="nt", SPIN=100000, LDS=98304, RETRY=24)

if __name__ == "__main__":
    P = dict(DEF)
    out = sys.argv[1]
    for kv in sys.argv[2:]:
        k, v = kv.split("=")
        try:
            v = int(v)
        except ValueError:
            v = v.replace("+", " ")
        P[k] = v
    open(out, "w").write(gen(P))
    print("wrote", out, P)
```

```python
import sys, re
from gen2 import A, desc, HDR, KN, ROW_E


WS_CTL = 0
C_POOL = 0
C_KARR = 512
C_P = 1024
C_KS = 1536
C_O = 2048
L_KC = 16
L_SK = 32
L_OL = 128


def gen(P):
    a = A()
    WPB, NX, NB = P["WPB"], P["NX"], P["NB"]
    sched = [tuple(int(v) for v in seg.split("x")) for seg in P["SCHED"].split(",")]
    S = sum(c * z for c, z in sched)
    NT = sum(c for c, z in sched)
    kfl = " " + P["KFLAGS"] if P["KFLAGS"] else ""
    WT = WPB // 2
    NR = 65536 // NX
    TW = NR // 32
    NP = TW - S
    NPOOL = NX * S
    NWG = 32 * NX
    loglx = NX.bit_length() - 1
    L = 9
    vOffK, vOffE = 1, 2
    base = 4
    buf = [base + 36 * b for b in range(NB)]
    tmp = base + 36 * NB
    acc = tmp + 8
    nv = acc + 32
    vT, vT1, vCnt, vAuxOff = nv, nv + 1, nv + 2, nv + 3
    assert vT % 2 == 0
    vOne64 = nv + 4
    AUX = nv + 6
    nv += 10
    STAMP = P.get("STAMP", 0)
    FW = 1 if P.get("ILVW") else WT
    assert NX == 8
    assert NP >= NB * WT + WT

    a.raw(f".globl {KN}\n.p2align 8\n.type {KN},@function\n{KN}:")
    a(f"s_cmp_ge_u32 s2, {NWG}")
    a("s_cbranch_scc1 L_done")
    a("s_load_dwordx4 s[4:7], s[0:1], 8")
    a("s_load_dwordx4 s[24:27], s[0:1], 24")
    if STAMP:
        a("s_memrealtime s[40:41]")
    a("v_lshrrev_b32 v3, 6, v0")
    a("v_and_b32 v0, 63, v0")
    a("v_readfirstlane_b32 s3, v3")
    a("v_lshrrev_b32 v3, 4, v0")
    a("v_and_b32 v2, 15, v0")
    a("v_lshlrev_b32 v1, 11, v3")
    a("v_lshl_add_u32 v1, v2, 4, v1")
    a("v_lshlrev_b32 v2, 17, v2")
    a("v_lshl_add_u32 v2, v3, 4, v2")
    a(f"s_and_b32 s30, s2, {NX-1}")
    a(f"s_lshr_b32 s32, s2, {loglx}")
    if P.get("ILVW"):
        a("s_and_b32 s33, s3, 1")
        a("s_lshr_b32 s34, s3, 1")
    else:
        a(f"s_lshr_b32 s33, s3, {WT.bit_length()-1}")
        a(f"s_and_b32 s34, s3, {WT-1}")
    a("s_lshl_b32 s35, s32, 24")
    a(f"s_mul_i32 s18, s30, {TW}")
    a("s_mov_b32 s10, 0x1000000")
    a("s_mov_b32 s11, 0x20000")
    a("s_mov_b32 s14, 0x200000")
    a("s_mov_b32 s15, 0x20000")
    ROT = P.get("ROT", 0)
    if ROT:
        a(f"s_mul_i32 s31, s32, {ROT}")
        if P.get("ROTX"):
            a(f"s_mul_i32 s36, s30, {P['ROTX']}")
            a("s_add_u32 s31, s31, s36")
        for _ in range(2):
            a(f"s_cmp_ge_u32 s31, {NP}")
            a(f"s_cselect_b32 s36, {NP}, 0")
            a("s_sub_u32 s31, s31, s36")
        a("s_add_u32 s19, s31, s34")
        a(f"s_cmp_ge_u32 s19, {NP}")
        a(f"s_cselect_b32 s36, {NP}, 0")
        a("s_sub_u32 s19, s19, s36")
        a("s_add_u32 s19, s19, s18")
        assert NB == 2
    else:
        a("s_add_u32 s19, s18, s34")
    a("s_lshl_b32 s16, s19, 13")
    a("s_lshl_b32 s17, s19, 6")
    a("s_cmp_eq_u32 s33, 0")
    a("s_waitcnt lgkmcnt(0)")
    if STAMP == 2:
        a("s_memrealtime s[68:69]")
    a("s_cselect_b32 s8, s4, s6")
    a("s_cselect_b32 s9, s5, s7")
    a("s_cselect_b32 s12, s24, s26")
    a("s_cselect_b32 s13, s25, s27")
    a("s_add_u32 s8, s8, s35")
    a("s_addc_u32 s9, s9, 0")
    a("s_and_b32 s9, s9, 0xffff")
    a("s_and_b32 s13, s13, 0xffff")

    def loads(b):
        r = buf[b]
        for j in range(8):
            a(f"buffer_load_dwordx4 v[{r+4*j}:{r+4*j+3}], v{vOffK}, s[8:11], s16 offen offset:{j*256}{kfl}")
        a(f"buffer_load_dwordx4 v[{r+32}:{r+35}], v{vOffE}, s[12:15], s17 offen")

    def compute(b):
        r = buf[b]
        def perm(dd):
            i, h = dd >> 1, dd & 1
            t = tmp + 4 * (dd & 1)
            for p in range(4):
                a(f"v_perm_b32 v{t+p}, v{r+4*(2*p+1)+i}, v{r+4*(2*p)+i}, s{20+h}")
        def mfma(dd):
            t = tmp + 4 * (dd & 1)
            a(f"v_mfma_f32_16x16x32_bf16 v[{acc+4*dd}:{acc+4*dd+3}], v[{r+32}:{r+35}], v[{t}:{t+3}], v[{acc+4*dd}:{acc+4*dd+3}]")
        perm(0); perm(1)
        for dd in range(7):
            mfma(dd)
            if dd + 2 < 8:
                perm(dd + 2)
        a("s_nop 1")
        mfma(7)

    PRE = P.get("PRE", 0)
    NPRO = NB if PRE else NB - 1
    def prologue():
        for b in range(NPRO):
            loads(b)
            if b + 1 < NPRO:
                a(f"s_add_u32 s16, s16, {WT*8192}")
                a(f"s_add_u32 s17, s17, {WT*64}")
    VLATE = P.get("VLATE", 0)
    if VLATE:
        a("s_cmp_lg_u32 s33, 0")
        a("s_cbranch_scc1 L_nopro")
        prologue()
        a.label("L_nopro")
    else:
        prologue()
    if STAMP == 3:
        a("s_memrealtime s[68:69]")
    a("s_load_dwordx2 s[56:57], s[0:1], 0")
    a("s_load_dwordx4 s[60:63], s[0:1], 40")
    a("s_load_dwordx2 s[28:29], s[0:1], 56")
    a("s_mov_b32 s20, 0x05040100")
    a("s_mov_b32 s21, 0x07060302")
    a("s_cmp_lg_u32 s3, 0")
    a("s_cbranch_scc1 L_noinit")
    a(f"v_lshlrev_b32 v3, 4, v0")
    for i in range(4):
        a(f"v_mov_b32 v{tmp+i}, 0")
    a(f"ds_write_b128 v3, v[{tmp}:{tmp+3}]")
    a(f"v_mov_b32 v{tmp}, {NPRO*WT}")
    a(f"v_mov_b32 v{tmp+2}, {NPRO*WT}")
    a("v_mov_b32 v3, 0")
    a(f"ds_write_b128 v3, v[{tmp}:{tmp+3}]")
    a.label("L_noinit")
    a(f"s_lshl_b32 s36, s33, 3")
    a(f"v_mov_b32 v{vCnt}, s36")
    a(f"v_mov_b32 v{vOne64}, 1")
    a(f"v_mov_b32 v{vOne64+1}, 0")
    a(f"v_and_b32 v{vAuxOff}, 15, v0")
    a(f"v_lshrrev_b32 v3, 4, v0")
    a("s_cmp_eq_u32 s33, 0")
    a("s_cselect_b64 vcc, -1, 0")
    a(f"v_cndmask_b32 v{vAuxOff}, v3, v{vAuxOff}, vcc")
    a(f"v_lshlrev_b32 v{vAuxOff}, 4, v{vAuxOff}")
    for i in range(32):
        a(f"v_mov_b32 v{acc+i}, 0")
    a("s_waitcnt lgkmcnt(0)")
    a("s_lshl_b32 s36, s32, 13")
    a("s_add_u32 s54, s28, s36")
    a("s_addc_u32 s55, s29, 0")
    a("s_lshl_b32 s36, s33, 8")
    a("s_add_u32 s52, s54, s36")
    a("s_addc_u32 s53, s55, 0")
    a("s_lshl_b32 s36, s32, 8")
    a("s_add_u32 s36, s56, s36")
    a("s_addc_u32 s37, s57, 0")
    a(f"s_add_u32 s38, s54, {C_P}")
    a("s_addc_u32 s39, s55, 0")
    a("s_cmp_eq_u32 s33, 0")
    a("s_cselect_b32 s64, s36, s38")
    a("s_cselect_b32 s65, s37, s39")
    a("s_cselect_b32 s66, 256, 64")
    a("s_and_b32 s65, s65, 0xffff")
    a("s_mov_b32 s67, 0x20000")
    a("s_barrier")
    if VLATE:
        a("s_cmp_eq_u32 s33, 0")
        a("s_cbranch_scc1 L_nopro2")
        prologue()
        a.label("L_nopro2")
    a(f"s_cmp_lg_u32 s3, {P.get('CLAIMW', 0)}")
    a("s_cbranch_scc1 L_loop0")
    if P.get('CLAIMW', 0):
        a("s_setprio 3")
    a("s_lshl_b32 s36, s32, 3")
    a("s_add_u32 s50, s62, s36")
    a("s_addc_u32 s51, s63, 0")
    a("s_mov_b32 s36, 1")
    a("s_atomic_or s36, s[50:51], 0x0 glc")
    a("s_waitcnt lgkmcnt(0)")
    a("s_and_b32 s37, s36, 1")
    a("s_cbranch_scc1 L_poll")
    a(f"v_mov_b32 v{tmp}, 0")
    a(f"v_lshrrev_b32 v{tmp+1}, 3, v0")
    a(f"v_lshlrev_b32 v{tmp+1}, 8, v{tmp+1}")
    a(f"v_and_b32 v{tmp+2}, 7, v0")
    a(f"v_lshl_add_u32 v{tmp+1}, v{tmp+2}, 2, v{tmp+1}")
    for i in range(4):
        a(f"v_mov_b32 v{tmp+4+i}, -1")
    a(f"v_lshlrev_b32 v{tmp+2}, 4, v0")
    a(f"v_lshlrev_b32 v{tmp+3}, 2, v0")
    a(f"v_add_u32 v{vT}, {C_O}, v{tmp+2}")
    for i in range(4):
        a(f"global_store_dwordx4 v{vT}, v[{tmp+4}:{tmp+7}], s[54:55] offset:{i*1024} sc1")
    a("s_mov_b64 exec, 0xffff")
    a(f"global_store_dword v{tmp+3}, v{tmp+4}, s[54:55] offset:{C_P} sc1")
    a("s_mov_b64 exec, 0x1ffff")
    a(f"global_store_dword v{tmp+1}, v{tmp}, s[54:55] sc1")
    a("s_mov_b64 exec, -1")
    a("s_waitcnt vmcnt(0)")
    a("s_mov_b32 s36, 2")
    a("s_atomic_or s36, s[50:51], 0x0 glc")
    a("s_waitcnt lgkmcnt(0)")
    a("s_branch L_setready")
    a.label("L_poll")
    a(f"s_mov_b32 s38, {P['SPIN']}")
    a.label("L_poll1")
    a("s_and_b32 s37, s36, 2")
    a("s_cbranch_scc1 L_setready")
    a("s_sub_u32 s38, s38, 1")
    a("s_cbranch_scc1 L_setready")
    a(f"s_sleep {P.get('PSLEEP', 4)}")
    a("s_mov_b32 s36, 0")
    a("s_atomic_or s36, s[50:51], 0x0 glc")
    a("s_waitcnt lgkmcnt(0)")
    a("s_branch L_poll1")
    a.label("L_setready")
    a(f"v_mov_b32 v{tmp}, 0")
    a(f"v_mov_b32 v{tmp+2}, 0")
    a(f"v_mov_b32 v{tmp+3}, 1")
    a("s_mov_b64 exec, 1")
    a(f"ds_add_u64 v{tmp}, v[{tmp+2}:{tmp+3}]")
    a(f"ds_add_u64 v{tmp}, v[{tmp+2}:{tmp+3}] offset:8")
    a("s_mov_b64 exec, -1")
    if P.get('CLAIMW', 0):
        a("s_setprio 0")
    a.label("L_loop0")
    if P.get("KPRIO"):
        a("s_cmp_lg_u32 s33, 0")
        a("s_cbranch_scc1 L_noprio")
        a(f"s_setprio {P['KPRIO']}")
        a.label("L_noprio")
    if P.get("PREWARM"):
        a("s_cmp_lg_u32 s34, 1")
        a("s_cbranch_scc1 L_nowarm")
        a(f"v_lshlrev_b32 v{tmp}, 21, v0")
        a(f"v_add_u32 v{tmp}, {NP*8192 + 4096}, v{tmp}")
        a("s_mov_b64 exec, 0xff")
        a(f"buffer_load_dword v{tmp+1}, v{tmp}, s[8:11], 0 offen nt")
        a("s_mov_b64 exec, -1")
        a("s_waitcnt vmcnt(0)")
        a.label("L_nowarm")
    if STAMP == 3:
        a("s_memrealtime s[72:73]")
        a("s_waitcnt vmcnt(0)")
        a("s_memrealtime s[70:71]")
        a("s_waitcnt lgkmcnt(0)")
        a(f"s_mul_i32 s36, s2, {WPB}")
        a("s_add_u32 s36, s36, s3")
        a("s_lshl_b32 s36, s36, 4")
        a("s_add_u32 s36, s36, 0x11000000")
        a("s_add_u32 s72, s28, s36")
        a("s_addc_u32 s73, s29, 0")
        a(f"v_mov_b32 v{tmp}, s40")
        a(f"v_mov_b32 v{tmp+1}, s68")
        a(f"v_mov_b32 v{tmp+2}, s70")
        a(f"v_mov_b32 v{tmp+3}, 0")
        a(f"v_mov_b32 v{tmp+4}, 0")
        a("s_mov_b64 exec, 1")
        a(f"global_store_dwordx4 v{tmp+4}, v[{tmp}:{tmp+3}], s[72:73]")
        a("s_mov_b64 exec, -1")
        a("s_waitcnt vmcnt(0)")
    if STAMP == 2:
        a("s_memrealtime s[72:73]")
        a("s_waitcnt vmcnt(0)")
        a("s_memrealtime s[70:71]")

    T4 = STAMP == 4
    stile = [74, 75, 92, 93, 94]
    def t4_after_wait(b):
        if T4:
            a("s_memrealtime s[68:69]")
            a(f"s_mov_b32 s70, s{stile[b]}")
    def t4_store():
        if T4:
            a("s_lshl_b32 s71, s70, 3")
            a("s_mov_b64 exec, 1")
            a(f"v_mov_b32 v{vT}, s68")
            a(f"v_mov_b32 v{vT1}, s69")
            a(f"buffer_store_dwordx2 v[{vT}:{vT1}], v{nvx}, s[76:79], s71 offen")
            a("s_mov_b64 exec, -1")
    def t4_set(nb):
        if T4:
            a(f"s_lshr_b32 s{stile[nb]}, s16, 13")
    if T4:
        nvx = nv
        nv += 1
        a(f"v_mov_b32 v{nvx}, 0")
        a("s_mov_b32 s70, 0x1000000")
        for b_ in range(NPRO):
            a(f"s_add_u32 s{stile[b_]}, s18, s34")
            if b_: a(f"s_add_u32 s{stile[b_]}, s{stile[b_]}, {b_*WT}")
        a("s_lshl_b32 s36, s32, 1")
        a("s_add_u32 s36, s36, s33")
        a("s_lshl_b32 s36, s36, 14")
        a("s_add_u32 s36, s36, 0x20000000")
        a("s_add_u32 s76, s28, s36")
        a("s_addc_u32 s77, s29, 0")
        a("s_and_b32 s77, s77, 0xffff")
        a("s_mov_b32 s78, 16384")
        a("s_mov_b32 s79, 0x20000")

    def grab_lds():
        a("s_mov_b64 exec, 1")
        a(f"ds_add_rtn_u64 v[{vT}:{vT1}], v{vCnt}, v[{vOne64}:{vOne64+1}]")
        a("s_mov_b64 exec, -1")

    def grab_pool():
        a("s_mov_b32 s23, 1")
        a("s_atomic_add s23, s[52:53], s58 glc")

    if PRE:
        a("s_branch L_p1m_0")
    for b in range(NB):
        nb = (b + NB - 1) % NB
        a.label(f"L_p1_{b}")
        grab_lds()
        a("s_waitcnt lgkmcnt(0)")
        a(f"v_readfirstlane_b32 s19, v{vT}")
        a(f"v_readfirstlane_b32 s22, v{vT1}")
        a("s_nop 2")
        if ROT:
            a("s_add_u32 s36, s19, s31")
            a(f"s_cmp_ge_u32 s36, {NP}")
            a(f"s_cselect_b32 s37, {NP}, 0")
            a("s_sub_u32 s36, s36, s37")
            a("s_add_u32 s36, s36, s18")
        else:
            a("s_add_u32 s36, s18, s19")
        a("s_lshl_b32 s16, s36, 13")
        a("s_lshl_b32 s17, s36, 6")
        a(f"s_cmp_ge_u32 s19, {NP-WT}")
        a(f"s_cbranch_scc1 L_sw_{b}")
        t4_store()
        t4_set(nb)
        loads(nb)
        if b == 0:
            a.label("L_p1m_0")
        a(f"s_waitcnt vmcnt({(L+1)*(NB-1)-1 if T4 else L*(NB-1)})")
        t4_after_wait(b)
        compute(b)
    a("s_branch L_p1_0")
    for b in range(NB):
        a.label(f"L_sw_{b}")
        a("s_cmp_lg_u32 s22, 0")
        a(f"s_cbranch_scc1 L_swok_{b}")
        a.label(f"L_swspin_{b}")
        a("s_sleep 4")
        a(f"ds_read_b64 v[{vT}:{vT1}], v{vCnt}")
        a("s_waitcnt lgkmcnt(0)")
        a(f"v_readfirstlane_b32 s22, v{vT1}")
        a("s_nop 2")
        a("s_cmp_eq_u32 s22, 0")
        a(f"s_cbranch_scc1 L_swspin_{b}")
        a.label(f"L_swok_{b}")
        a("s_lshl_b32 s58, s30, 2")
        a(f"s_add_u32 s59, s18, {NP}")
        a(f"s_mov_b32 s80, {P['RETRY']}")
        a("s_mov_b32 s82, 0")
        grab_pool()
        a(f"s_branch L_p2m_{b}")
    for b in range(NB):
        nb = (b + NB - 1) % NB
        a.label(f"L_p2_{b}")
        a("s_cmp_lg_u32 s82, 0")
        a(f"s_cbranch_scc1 L_p2c_{b}")
        a("s_waitcnt lgkmcnt(0)")
        a(f"s_cmp_ge_u32 s23, {NT}")
        a(f"s_cbranch_scc1 L_st_{b}")
        J = 0; O = 0
        if P.get("ILVT", 1):
            for k, (c, z) in enumerate(sched):
                off = (O - J) & 0xffffffff
                if k == 0:
                    a(f"s_mov_b32 s82, {z}")
                    a(f"s_mov_b32 s37, {off}")
                    a(f"s_mov_b32 s83, {c}")
                else:
                    a(f"s_cmp_ge_u32 s23, {J}")
                    a(f"s_cselect_b32 s82, {z}, s82")
                    a(f"s_cselect_b32 s37, {off}, s37")
                    if c != sched[k-1][0] and z > 1:
                        a(f"s_cselect_b32 s83, {c}, s83")
                J += c; O += c * z
            a("s_add_u32 s81, s23, s37")
            a("s_add_u32 s81, s81, s59")
        else:
            for k, (c, z) in enumerate(sched):
                lz = z.bit_length() - 1
                assert 1 << lz == z
                off = (O - (J << lz)) & 0xffffffff
                if k == 0:
                    a(f"s_mov_b32 s36, {lz}")
                    a(f"s_mov_b32 s37, {off}")
                else:
                    a(f"s_cmp_ge_u32 s23, {J}")
                    a(f"s_cselect_b32 s36, {lz}, s36")
                    a(f"s_cselect_b32 s37, {off}, s37")
                J += c; O += c * z
            a("s_lshl_b32 s81, s23, s36")
            a("s_add_u32 s81, s81, s37")
            a("s_add_u32 s81, s81, s59")
            a("s_lshl_b32 s82, 1, s36")
            a("s_mov_b32 s83, 1")
        EARLY = P.get("EARLY", 0)
        if EARLY == 1:
            grab_pool()
        if EARLY == 2:
            a("s_cmp_lg_u32 s82, 1")
            a(f"s_cbranch_scc1 L_p2c_{b}")
            grab_pool()
        a.label(f"L_p2c_{b}")
        a("s_lshl_b32 s16, s81, 13")
        a("s_lshl_b32 s17, s81, 6")
        a("s_add_u32 s81, s81, s83")
        a("s_sub_u32 s82, s82, 1")
        if EARLY == 0:
            a("s_cmp_lg_u32 s82, 0")
            a(f"s_cbranch_scc1 L_p2m_{b}")
            grab_pool()
        if EARLY == 2:
            a("s_cmp_lg_u32 s82, 1")
            a(f"s_cbranch_scc1 L_p2m_{b}")
            grab_pool()
        a.label(f"L_p2m_{b}")
        if T4:
            a("s_waitcnt lgkmcnt(0)") if False else None
        t4_store()
        t4_set(nb)
        loads(nb)
        a(f"s_waitcnt vmcnt({(L+1)*(NB-1)-1 if T4 else L*(NB-1)})")
        t4_after_wait(b)
        compute(b)
    a("s_branch L_p2_0")
    for b in range(NB):
        a.label(f"L_st_{b}")
        a("s_cmp_eq_u32 s80, 0")
        a(f"s_cbranch_scc1 L_dr_{b}")
        a("s_sub_u32 s80, s80, 1")
        a("s_load_dwordx8 s[84:91], s[52:53], 0x0 glc")
        a("s_waitcnt lgkmcnt(0)")
        a("s_mov_b32 s36, s84")
        a("s_mov_b32 s37, 0")
        for x in range(1, NX):
            a(f"s_cmp_lt_u32 s{84+x}, s36")
            a(f"s_cselect_b32 s36, s{84+x}, s36")
            a(f"s_cselect_b32 s37, {x}, s37")
        a(f"s_cmp_ge_u32 s36, {NT}")
        a(f"s_cbranch_scc1 L_dr_{b}")
        a("s_lshl_b32 s58, s37, 2")
        a(f"s_mul_i32 s59, s37, {TW}")
        a(f"s_add_u32 s59, s59, {NP}")
        grab_pool()
        a(f"s_branch L_p2_{b}")
    for b in range(NB):
        a.label(f"L_dr_{b}")
        a(f"buffer_load_dwordx4 v[{AUX}:{AUX+3}], v{vAuxOff}, s[64:67], 0 offen sc1")
        for k in range(NB - 1):
            a(f"s_waitcnt vmcnt({L*(NB-2-k)+1})")
            compute((b + k) % NB)
        if b + 1 < NB:
            a("s_branch L_loopdone")
    a.label("L_loopdone")
    if STAMP:
        a("s_memrealtime s[42:43]")
        a("s_waitcnt lgkmcnt(0)")
        a("v_mov_b32 v4, s42")
        a("v_mov_b32 v5, 96")
        a("s_mov_b64 exec, 1")
        a("ds_max_u32 v5, v4")
        a("s_mov_b64 exec, -1")
    a("v_and_b32 v4, 15, v0")
    a("v_lshrrev_b32 v5, 4, v0")
    a("s_cmp_lg_u32 s33, 0")
    a("s_cbranch_scc1 L_vend")
    if P.get("KMIMIC", 0):
        L_KP = 8192
        WS_KP = 1 << 20
        a("s_lshl_b32 s36, s34, 13")
        a("v_lshlrev_b32 v6, 4, v0")
        a("v_add_u32 v7, s36, v6")
        a("s_nop 7")
        for dd in range(8):
            a(f"ds_write_b128 v7, v[{acc+4*dd}:{acc+4*dd+3}] offset:{L_KP + dd*1024}")
        a("s_waitcnt lgkmcnt(0)")
        a("s_mov_b64 exec, 1")
        a(f"v_mov_b32 v8, {L_KC}")
        a("v_mov_b32 v9, 1")
        a("ds_add_rtn_u32 v9, v8, v9")
        a("s_mov_b64 exec, -1")
        a("s_waitcnt lgkmcnt(0)")
        a("v_readfirstlane_b32 s36, v9")
        a("s_nop 3")
        a(f"s_cmp_lg_u32 s36, {WT-1}")
        a("s_cbranch_scc1 L_fin")
        a("s_lshl_b32 s36, s32, 16")
        a(f"s_add_u32 s36, s36, {WS_KP}")
        a("s_add_u32 s8, s28, s36")
        a("s_addc_u32 s9, s29, 0")
        a("s_and_b32 s9, s9, 0xffff")
        a("s_mov_b32 s10, 65536")
        a("s_mov_b32 s11, 0x20000")
        a("s_lshl_b32 s37, s30, 13")
        for dd in range(8):
            for w in range(WT):
                a(f"ds_read_b128 v[{20+4*w}:{23+4*w}], v6 offset:{L_KP + w*8192 + dd*1024}")
            for w in range(1, WT):
                a(f"s_waitcnt lgkmcnt({WT-1-w})")
                for i in range(4):
                    if w == 1:
                        a(f"v_add_f32 v{acc+4*dd+i}, v{20+i}, v{24+i}")
                    else:
                        a(f"v_add_f32 v{acc+4*dd+i}, v{acc+4*dd+i}, v{20+4*w+i}")
            a(f"buffer_store_dwordx4 v[{acc+4*dd}:{acc+4*dd+3}], v6, s[8:11], s37 offen sc1")
            if dd < 7:
                a("s_add_u32 s37, s37, 1024")
        a("s_waitcnt vmcnt(0)")
        a("s_mov_b32 s36, 1")
        a(f"s_atomic_add s36, s[54:55], {C_KARR} glc")
        a("s_waitcnt lgkmcnt(0)")
        a(f"s_cmp_lg_u32 s36, {NX-1}")
        a("s_cbranch_scc1 L_fin")
        Q = 8
        for j in range(4):
            a(f"v_lshlrev_b32 v{Q+2*j}, 16, v{AUX+j}")
            a(f"v_and_b32 v{Q+2*j+1}, 0xffff0000, v{AUX+j}")
        T = 16
        LB = 20
        for half in range(4):
            for d2 in range(2):
                dd = half * 2 + d2
                for x in range(NX):
                    a(f"s_mov_b32 s37, {x*8192 + dd*1024}")
                    rr = LB + (d2 * NX + x) * 4
                    a(f"buffer_load_dwordx4 v[{rr}:{rr+3}], v6, s[8:11], s37 offen sc1")
            for d2 in range(2):
                dd = half * 2 + d2
                rr = LB + d2 * NX * 4
                a(f"s_waitcnt vmcnt({NX if d2 == 0 else 0})")
                for x in range(1, NX):
                    for i in range(4):
                        a(f"v_add_f32 v{rr+i}, v{rr+i}, v{rr+4*x+i}")
                a(f"v_cvt_pk_bf16_f32 v{rr+4}, v{rr}, v{rr+1}")
                a(f"v_cvt_pk_bf16_f32 v{rr+5}, v{rr+2}, v{rr+3}")
                a(f"v_lshlrev_b32 v{rr}, 16, v{rr+4}")
                a(f"v_and_b32 v{rr+1}, 0xffff0000, v{rr+4}")
                a(f"v_lshlrev_b32 v{rr+2}, 16, v{rr+5}")
                a(f"v_and_b32 v{rr+3}, 0xffff0000, v{rr+5}")
                for i in range(4):
                    if dd == 0:
                        a(f"v_mul_f32 v{T+i}, v{Q}, v{rr+i}")
                    else:
                        a(f"v_fmac_f32 v{T+i}, v{Q+dd}, v{rr+i}")
        for sh in (8, 4, 2, 1):
            a("s_nop 1")
            for i in range(4):
                a(f"v_add_f32_dpp v{T+i}, v{T+i}, v{T+i} row_ror:{sh} row_mask:0xf bank_mask:0xf")
        a("v_lshlrev_b32 v6, 4, v5")
        a("v_cmp_eq_u32 vcc, 0, v4")
        a("s_and_saveexec_b64 s[48:49], vcc")
        a(f"ds_write_b128 v6, v[{T}:{T+3}] offset:{L_SK}")
        a("s_mov_b64 exec, s[48:49]")
        a("v_lshlrev_b32 v6, 2, v4")
        a("s_waitcnt lgkmcnt(0)")
        a(f"ds_read_b32 v8, v6 offset:{L_SK}")
        a("s_waitcnt lgkmcnt(0)")
    else:
        a("s_waitcnt vmcnt(0)")
        Q = 8
        for j in range(4):
            a(f"v_lshlrev_b32 v{Q+2*j}, 16, v{AUX+j}")
            a(f"v_and_b32 v{Q+2*j+1}, 0xffff0000, v{AUX+j}")
        T = 16
        for i in range(4):
            a(f"v_mul_f32 v{T+i}, v{Q}, v{acc+i}")
        for dd in range(1, 8):
            for i in range(4):
                a(f"v_fmac_f32 v{T+i}, v{Q+dd}, v{acc+4*dd+i}")
        for sh in (8, 4, 2, 1):
            a("s_nop 1")
            for i in range(4):
                a(f"v_add_f32_dpp v{T+i}, v{T+i}, v{T+i} row_ror:{sh} row_mask:0xf bank_mask:0xf")
        a("v_lshlrev_b32 v6, 4, v5")
        a("v_cmp_eq_u32 vcc, 0, v4")
        a("s_and_saveexec_b64 s[48:49], vcc")
        for i in range(4):
            a(f"ds_add_f32 v6, v{T+i} offset:{L_SK + 4*i}")
        a("s_mov_b64 exec, 1")
        a(f"v_mov_b32 v6, {L_KC}")
        a("v_mov_b32 v7, 1")
        a("ds_add_rtn_u32 v7, v6, v7")
        a("s_mov_b64 exec, -1")
        a("s_waitcnt lgkmcnt(0)")
        a("v_readfirstlane_b32 s36, v7")
        a("s_nop 3")
        a(f"s_cmp_lg_u32 s36, {WT-1}")
        a("s_cbranch_scc1 L_fin")
        a("v_lshlrev_b32 v6, 2, v4")
        a(f"ds_read_b32 v7, v6 offset:{L_SK}")
        a("s_lshl_b32 s36, s30, 6")
        a("v_add_u32 v6, s36, v6")
        a("s_waitcnt lgkmcnt(0)")
        a("s_mov_b64 exec, 0xffff")
        a(f"global_store_dword v6, v7, s[54:55] offset:{C_KS} sc1")
        a("s_mov_b64 exec, -1")
        a("s_waitcnt vmcnt(0)")
        a("s_mov_b32 s36, 1")
        a(f"s_atomic_add s36, s[54:55], {C_KARR} glc")
        a("s_waitcnt lgkmcnt(0)")
        a(f"s_cmp_lg_u32 s36, {NX-1}")
        a("s_cbranch_scc1 L_fin")
        a("v_lshlrev_b32 v6, 2, v0")
        a(f"global_load_dword v8, v6, s[54:55] offset:{C_KS} sc1")
        a(f"global_load_dword v9, v6, s[54:55] offset:{C_KS+256} sc1")
        a("v_xor_b32 v6, 16, v0")
        a("v_lshlrev_b32 v6, 2, v6")
        a("v_xor_b32 v7, 32, v0")
        a("v_lshlrev_b32 v7, 2, v7")
        a("s_waitcnt vmcnt(0)")
        a("v_add_f32 v8, v8, v9")
        a("ds_bpermute_b32 v9, v6, v8")
        a("s_waitcnt lgkmcnt(0)")
        a("v_add_f32 v8, v8, v9")
        a("ds_bpermute_b32 v9, v7, v8")
        a("s_waitcnt lgkmcnt(0)")
        a("v_add_f32 v8, v8, v9")
    a("v_cvt_pk_bf16_f32 v8, v8, v8")
    a("v_lshlrev_b32 v8, 16, v8")
    a("v_mul_f32 v8, 0x3db504f3, v8")
    a("v_cvt_pk_bf16_f32 v8, v8, v8")
    a("v_lshlrev_b32 v8, 16, v8")
    a("v_mov_b32 v9, v8")
    for sh in (8, 4, 2, 1):
        a("s_nop 1")
        a(f"v_max_f32_dpp v9, v9, v9 row_ror:{sh} row_mask:0xf bank_mask:0xf")
    a("v_sub_f32 v8, v8, v9")
    a("v_mul_f32 v8, 0x3fb8aa3b, v8")
    a("v_exp_f32 v8, v8")
    a("s_nop 0")
    a("v_mov_b32 v9, v8")
    for sh in (8, 4, 2, 1):
        a("s_nop 1")
        a(f"v_add_f32_dpp v9, v9, v9 row_ror:{sh} row_mask:0xf bank_mask:0xf")
    a("v_rcp_f32 v9, v9")
    a("s_nop 0")
    a("v_mul_f32 v8, v8, v9")
    a("v_cvt_pk_bf16_f32 v8, v8, v8")
    a("v_lshlrev_b32 v8, 16, v8")
    a("v_lshlrev_b32 v6, 2, v4")
    a("s_mov_b64 exec, 0xffff")
    a(f"global_store_dword v6, v8, s[54:55] offset:{C_P} sc1")
    a("s_branch L_fin")
    a.label("L_vend")
    a(f"s_mov_b32 s36, {P['SPIN']}")
    a.label("L_pchk")
    a("s_waitcnt vmcnt(0)")
    a(f"v_cmp_eq_u32 vcc, -1, v{AUX}")
    a(f"v_cmp_eq_u32 s[48:49], -1, v{AUX+1}")
    a("s_or_b64 vcc, vcc, s[48:49]")
    a(f"v_cmp_eq_u32 s[48:49], -1, v{AUX+2}")
    a("s_or_b64 vcc, vcc, s[48:49]")
    a(f"v_cmp_eq_u32 s[48:49], -1, v{AUX+3}")
    a("s_or_b64 vcc, vcc, s[48:49]")
    a("s_cbranch_vccz L_pok")
    a("s_sub_u32 s36, s36, 1")
    a("s_cbranch_scc1 L_pok")
    a("s_sleep 8")
    a(f"buffer_load_dwordx4 v[{AUX}:{AUX+3}], v{vAuxOff}, s[64:67], 0 offen sc1")
    a("s_branch L_pchk")
    a.label("L_pok")
    if STAMP:
        a("s_memrealtime s[42:43]")
        a("s_waitcnt lgkmcnt(0)")
        a("v_mov_b32 v6, s42")
        a("v_mov_b32 v7, 100")
        a("s_mov_b64 exec, 1")
        a("ds_max_u32 v7, v6")
        a("s_mov_b64 exec, -1")
    O = 8
    for dd in range(8):
        a(f"v_mul_f32 v{O+dd}, v{AUX}, v{acc+4*dd}")
    for i in range(1, 4):
        for dd in range(8):
            a(f"v_fmac_f32 v{O+dd}, v{AUX+i}, v{acc+4*dd+i}")
    a("s_nop 1")
    a(f"v_permlane32_swap_b32 v{O+0}, v{O+4}")
    a(f"v_permlane32_swap_b32 v{O+2}, v{O+6}")
    a(f"v_permlane32_swap_b32 v{O+1}, v{O+5}")
    a(f"v_permlane32_swap_b32 v{O+3}, v{O+7}")
    a("s_nop 1")
    a(f"v_add_f32 v{O+0}, v{O+0}, v{O+4}")
    a(f"v_add_f32 v{O+2}, v{O+2}, v{O+6}")
    a(f"v_add_f32 v{O+1}, v{O+1}, v{O+5}")
    a(f"v_add_f32 v{O+3}, v{O+3}, v{O+7}")
    a("s_nop 1")
    a(f"v_permlane16_swap_b32 v{O+0}, v{O+2}")
    a(f"v_permlane16_swap_b32 v{O+1}, v{O+3}")
    a("s_nop 1")
    a(f"v_add_f32 v{O+0}, v{O+0}, v{O+2}")
    a(f"v_add_f32 v{O+1}, v{O+1}, v{O+3}")
    a("v_lshlrev_b32 v6, 3, v0")
    a("s_lshl_b32 s36, s34, 9")
    a("v_add_u32 v7, s36, v6")
    a(f"ds_write_b64 v7, v[{O}:{O+1}] offset:{L_OL}")
    a("s_waitcnt lgkmcnt(0)")
    a("s_barrier")
    if STAMP:
        a("s_memrealtime s[44:45]")
    a(f"s_cmp_lg_u32 s3, {FW}")
    a("s_cbranch_scc1 L_fin")
    for w in range(WT):
        a(f"ds_read_b64 v[{10+2*w}:{11+2*w}], v6 offset:{L_OL + 512*w}")
    for w in range(WT):
        a(f"s_waitcnt lgkmcnt({WT-1-w})")
        if w == 0:
            a("v_mov_b32 v8, v10")
            a("v_mov_b32 v9, v11")
        else:
            a(f"v_add_f32 v8, v8, v{10+2*w}")
            a(f"v_add_f32 v9, v9, v{11+2*w}")
    a("s_cmp_eq_u32 s30, 0")
    a("s_cbranch_scc1 L_final")
    a("v_mov_b32 v10, 0x7fc00000")
    a("v_cmp_eq_u32 vcc, -1, v8")
    a("v_cmp_eq_u32 s[48:49], -1, v9")
    a("s_lshl_b32 s36, s30, 9")
    a("v_add_u32 v6, s36, v6")
    a("v_cndmask_b32 v8, v8, v10, vcc")
    a("v_cndmask_b32 v9, v9, v10, s[48:49]")
    a(f"global_store_dwordx2 v6, v[8:9], s[54:55] offset:{C_O} sc1")
    a("s_branch L_fin")
    a.label("L_final")
    a(f"v_add_u32 v6, {C_O}, v6")
    a(f"s_mov_b32 s36, {P['SPIN']}")
    a.label("L_opoll")
    for x in range(1, NX):
        a(f"global_load_dwordx2 v[{10+2*x}:{11+2*x}], v6, s[54:55] offset:{x*512} sc1")
    a("s_waitcnt vmcnt(0)")
    a(f"v_cmp_eq_u32 vcc, -1, v12")
    for r in range(13, 10 + 2 * NX):
        a(f"v_cmp_eq_u32 s[48:49], -1, v{r}")
        a("s_or_b64 vcc, vcc, s[48:49]")
    a("s_cbranch_vccz L_ook")
    a("s_sub_u32 s36, s36, 1")
    a("s_cbranch_scc1 L_ook")
    a("s_sleep 2")
    a("s_branch L_opoll")
    a.label("L_ook")
    for x in range(1, NX):
        a(f"v_add_f32 v8, v8, v{10+2*x}")
        a(f"v_add_f32 v9, v9, v{11+2*x}")
    a("v_cvt_pk_bf16_f32 v8, v8, v9")
    a("s_lshl_b32 s36, s32, 8")
    a("s_add_u32 s12, s60, s36")
    a("s_addc_u32 s13, s61, 0")
    a("s_and_b32 s13, s13, 0xffff")
    a("s_mov_b32 s14, 256")
    a("s_mov_b32 s15, 0x20000")
    a("v_lshlrev_b32 v6, 4, v4")
    a("v_lshl_add_u32 v6, v5, 2, v6")
    a("buffer_store_dword v8, v6, s[12:15], 0 offen")
    a.label("L_fin")
    if STAMP:
        a(f"s_cmp_lg_u32 s3, {FW}")
        a("s_cbranch_scc1 L_done")
        a("s_waitcnt vmcnt(0)")
        a("s_memrealtime s[46:47]")
        a("s_getreg_b32 s37, hwreg(HW_REG_XCC_ID)")
        a("s_waitcnt lgkmcnt(0)")
        a("s_lshl_b32 s36, s2, 5")
        a("s_add_u32 s36, s36, 0x10000000")
        a("s_add_u32 s8, s28, s36")
        a("s_addc_u32 s9, s29, 0")
        a("s_and_b32 s9, s9, 0xffff")
        a("s_mov_b32 s10, 32")
        a("s_mov_b32 s11, 0x20000")
        a("v_mov_b32 v9, 96")
        a("ds_read_b64 v[10:11], v9")
        a("v_mov_b32 v4, s40")
        a("v_mov_b32 v6, s44")
        a("v_mov_b32 v7, s46")
        a("v_mov_b32 v8, s37")
        a("s_waitcnt lgkmcnt(0)")
        a("v_mov_b32 v5, v10")
        a("v_mov_b32 v9, v11")
        if STAMP == 2:
            a("v_mov_b32 v5, s68")
            a("v_mov_b32 v6, s72")
            a("v_mov_b32 v7, s70")
            a("v_mov_b32 v9, 0")
        a("buffer_store_dword v9, v12, s[8:11], 0 offen offset:20") if False else None
        a("v_mov_b32 v12, 0")
        a("s_mov_b64 exec, 1")
        a("buffer_store_dwordx4 v[4:7], v12, s[8:11], 0 offen")
        a("buffer_store_dwordx2 v[8:9], v12, s[8:11], 0 offen offset:16")
    a.label("L_done")
    a("s_endpgm")
    lds = P["LDS"]
    hdr = HDR + f"; @launch grid=({NWG},1,1) block=({WPB*64},1,1) lds={lds}\n"
    return hdr + '.amdgcn_target "amdgcn-amd-amdhsa--gfx950"\n.text\n' + a.text() + desc(KN, nv, 96)


DEF = dict(WPB=16, NX=8, NB=2, SCHED="8x8,8x4,8x2,16x1", KFLAGS="nt", SPIN=100000, LDS=98304, RETRY=24)

if __name__ == "__main__":
    P = dict(DEF)
    out = sys.argv[1]
    for kv in sys.argv[2:]:
        k, v = kv.split("=")
        try:
            v = int(v)
        except ValueError:
            v = v.replace("+", " ")
        P[k] = v
    open(out, "w").write(gen(P))
    print("wrote", out, P)
```

```python
import sys, re
from gen2 import A, desc, HDR, KN, ROW_E


WS_CTL = 0
C_POOL = 0
C_KARR = 512
C_P = 1024
C_KS = 1536
C_O = 2048
L_KC = 16
L_SK = 32
L_OL = 128


def gen(P):
    a = A()
    WPB, NX, NB = P["WPB"], P["NX"], P["NB"]
    sched = [tuple(int(v) for v in seg.split("x")) for seg in P["SCHED"].split(",")]
    S = sum(c * z for c, z in sched)
    NT = sum(c for c, z in sched)
    kfl = " " + P["KFLAGS"] if P["KFLAGS"] else ""
    WT = WPB // 2
    NR = 65536 // NX
    TW = NR // 32
    NP = TW - S
    NPOOL = NX * S
    NWG = 32 * NX
    loglx = NX.bit_length() - 1
    L = 9
    vOffK, vOffE = 1, 2
    base = 4
    buf = [base + 36 * b for b in range(NB)]
    tmp = base + 36 * NB
    acc = tmp + 8
    nv = acc + 32
    vT, vT1, vCnt, vAuxOff = nv, nv + 1, nv + 2, nv + 3
    assert vT % 2 == 0
    vOne64 = nv + 4
    AUX = nv + 6
    nv += 10
    STAMP = P.get("STAMP", 0)
    FW = 1 if P.get("ILVW") else (0 if P.get("SWAPT") else WT)
    assert NX == 8
    assert NP >= NB * WT + WT

    a.raw(f".globl {KN}\n.p2align 8\n.type {KN},@function\n{KN}:")
    a(f"s_cmp_ge_u32 s2, {NWG}")
    a("s_cbranch_scc1 L_done")
    a("s_load_dwordx4 s[4:7], s[0:1], 8")
    a("s_load_dwordx4 s[24:27], s[0:1], 24")
    if STAMP:
        a("s_memrealtime s[40:41]")
    a("v_lshrrev_b32 v3, 6, v0")
    a("v_and_b32 v0, 63, v0")
    a("v_readfirstlane_b32 s3, v3")
    a("v_lshrrev_b32 v3, 4, v0")
    a("v_and_b32 v2, 15, v0")
    a("v_lshlrev_b32 v1, 11, v3")
    a("v_lshl_add_u32 v1, v2, 4, v1")
    a("v_lshlrev_b32 v2, 17, v2")
    a("v_lshl_add_u32 v2, v3, 4, v2")
    a(f"s_and_b32 s30, s2, {NX-1}")
    a(f"s_lshr_b32 s32, s2, {loglx}")
    if P.get("ILVW"):
        a("s_and_b32 s33, s3, 1")
        a("s_lshr_b32 s34, s3, 1")
    else:
        a(f"s_lshr_b32 s33, s3, {WT.bit_length()-1}")
        if P.get("SWAPT"):
            a("s_xor_b32 s33, s33, 1")
        a(f"s_and_b32 s34, s3, {WT-1}")
    a("s_lshl_b32 s35, s32, 24")
    a(f"s_mul_i32 s18, s30, {TW}")
    a("s_mov_b32 s10, 0x1000000")
    a("s_mov_b32 s11, 0x20000")
    a("s_mov_b32 s14, 0x200000")
    a("s_mov_b32 s15, 0x20000")
    ROT = P.get("ROT", 0)
    if ROT:
        a(f"s_mul_i32 s31, s32, {ROT}")
        if P.get("ROTX"):
            a(f"s_mul_i32 s36, s30, {P['ROTX']}")
            a("s_add_u32 s31, s31, s36")
        for _ in range(2):
            a(f"s_cmp_ge_u32 s31, {NP}")
            a(f"s_cselect_b32 s36, {NP}, 0")
            a("s_sub_u32 s31, s31, s36")
        a("s_add_u32 s19, s31, s34")
        a(f"s_cmp_ge_u32 s19, {NP}")
        a(f"s_cselect_b32 s36, {NP}, 0")
        a("s_sub_u32 s19, s19, s36")
        a("s_add_u32 s19, s19, s18")
        assert NB == 2
    else:
        a("s_add_u32 s19, s18, s34")
    a("s_lshl_b32 s16, s19, 13")
    a("s_lshl_b32 s17, s19, 6")
    a("s_cmp_eq_u32 s33, 0")
    a("s_waitcnt lgkmcnt(0)")
    if STAMP == 2:
        a("s_memrealtime s[68:69]")
    a("s_cselect_b32 s8, s4, s6")
    a("s_cselect_b32 s9, s5, s7")
    a("s_cselect_b32 s12, s24, s26")
    a("s_cselect_b32 s13, s25, s27")
    a("s_add_u32 s8, s8, s35")
    a("s_addc_u32 s9, s9, 0")
    a("s_and_b32 s9, s9, 0xffff")
    a("s_and_b32 s13, s13, 0xffff")

    def loads(b):
        r = buf[b]
        for j in range(8):
            a(f"buffer_load_dwordx4 v[{r+4*j}:{r+4*j+3}], v{vOffK}, s[8:11], s16 offen offset:{j*256}{kfl}")
        a(f"buffer_load_dwordx4 v[{r+32}:{r+35}], v{vOffE}, s[12:15], s17 offen")

    def compute(b):
        r = buf[b]
        def perm(dd):
            i, h = dd >> 1, dd & 1
            t = tmp + 4 * (dd & 1)
            for p in range(4):
                a(f"v_perm_b32 v{t+p}, v{r+4*(2*p+1)+i}, v{r+4*(2*p)+i}, s{20+h}")
        def mfma(dd):
            t = tmp + 4 * (dd & 1)
            a(f"v_mfma_f32_16x16x32_bf16 v[{acc+4*dd}:{acc+4*dd+3}], v[{r+32}:{r+35}], v[{t}:{t+3}], v[{acc+4*dd}:{acc+4*dd+3}]")
        perm(0); perm(1)
        for dd in range(7):
            mfma(dd)
            if dd + 2 < 8:
                perm(dd + 2)
        a("s_nop 1")
        mfma(7)

    PRE = P.get("PRE", 0)
    NPRO = NB if PRE else NB - 1
    def prologue():
        for b in range(NPRO):
            loads(b)
            if b + 1 < NPRO:
                a(f"s_add_u32 s16, s16, {WT*8192}")
                a(f"s_add_u32 s17, s17, {WT*64}")
    VLATE = P.get("VLATE", 0)
    if VLATE:
        a("s_cmp_lg_u32 s33, 0")
        a("s_cbranch_scc1 L_nopro")
        prologue()
        a.label("L_nopro")
    else:
        prologue()
    if STAMP == 3:
        a("s_memrealtime s[68:69]")
    a("s_load_dwordx2 s[56:57], s[0:1], 0")
    a("s_load_dwordx4 s[60:63], s[0:1], 40")
    a("s_load_dwordx2 s[28:29], s[0:1], 56")
    a("s_mov_b32 s20, 0x05040100")
    a("s_mov_b32 s21, 0x07060302")
    a("s_cmp_lg_u32 s3, 0")
    a("s_cbranch_scc1 L_noinit")
    a(f"v_lshlrev_b32 v3, 4, v0")
    for i in range(4):
        a(f"v_mov_b32 v{tmp+i}, 0")
    a(f"ds_write_b128 v3, v[{tmp}:{tmp+3}]")
    a(f"v_mov_b32 v{tmp}, {NPRO*WT}")
    a(f"v_mov_b32 v{tmp+2}, {NPRO*WT}")
    a("v_mov_b32 v3, 0")
    a(f"ds_write_b128 v3, v[{tmp}:{tmp+3}]")
    a.label("L_noinit")
    a(f"s_lshl_b32 s36, s33, 3")
    a(f"v_mov_b32 v{vCnt}, s36")
    a(f"v_mov_b32 v{vOne64}, 1")
    a(f"v_mov_b32 v{vOne64+1}, 0")
    a(f"v_and_b32 v{vAuxOff}, 15, v0")
    a(f"v_lshrrev_b32 v3, 4, v0")
    a("s_cmp_eq_u32 s33, 0")
    a("s_cselect_b64 vcc, -1, 0")
    a(f"v_cndmask_b32 v{vAuxOff}, v3, v{vAuxOff}, vcc")
    a(f"v_lshlrev_b32 v{vAuxOff}, 4, v{vAuxOff}")
    for i in range(32):
        a(f"v_mov_b32 v{acc+i}, 0")
    a("s_waitcnt lgkmcnt(0)")
    a("s_lshl_b32 s36, s32, 13")
    a("s_add_u32 s54, s28, s36")
    a("s_addc_u32 s55, s29, 0")
    a("s_lshl_b32 s36, s33, 8")
    a("s_add_u32 s52, s54, s36")
    a("s_addc_u32 s53, s55, 0")
    a("s_lshl_b32 s36, s32, 8")
    a("s_add_u32 s36, s56, s36")
    a("s_addc_u32 s37, s57, 0")
    a(f"s_add_u32 s38, s54, {C_P}")
    a("s_addc_u32 s39, s55, 0")
    a("s_cmp_eq_u32 s33, 0")
    a("s_cselect_b32 s64, s36, s38")
    a("s_cselect_b32 s65, s37, s39")
    a("s_cselect_b32 s66, 256, 64")
    a("s_and_b32 s65, s65, 0xffff")
    a("s_mov_b32 s67, 0x20000")
    a("s_barrier")
    if VLATE:
        a("s_cmp_eq_u32 s33, 0")
        a("s_cbranch_scc1 L_nopro2")
        prologue()
        a.label("L_nopro2")
    a(f"s_cmp_lg_u32 s3, {P.get('CLAIMW', 0)}")
    a("s_cbranch_scc1 L_loop0")
    if P.get('CLAIMW', 0):
        a("s_setprio 3")
    a("s_lshl_b32 s36, s32, 3")
    a("s_add_u32 s50, s62, s36")
    a("s_addc_u32 s51, s63, 0")
    a("s_mov_b32 s36, 1")
    a("s_atomic_or s36, s[50:51], 0x0 glc")
    a("s_waitcnt lgkmcnt(0)")
    a("s_and_b32 s37, s36, 1")
    a("s_cbranch_scc1 L_poll")
    a(f"v_mov_b32 v{tmp}, 0")
    a(f"v_lshrrev_b32 v{tmp+1}, 3, v0")
    a(f"v_lshlrev_b32 v{tmp+1}, 8, v{tmp+1}")
    a(f"v_and_b32 v{tmp+2}, 7, v0")
    a(f"v_lshl_add_u32 v{tmp+1}, v{tmp+2}, 2, v{tmp+1}")
    for i in range(4):
        a(f"v_mov_b32 v{tmp+4+i}, -1")
    a(f"v_lshlrev_b32 v{tmp+2}, 4, v0")
    a(f"v_lshlrev_b32 v{tmp+3}, 2, v0")
    a(f"v_add_u32 v{vT}, {C_O}, v{tmp+2}")
    for i in range(4):
        a(f"global_store_dwordx4 v{vT}, v[{tmp+4}:{tmp+7}], s[54:55] offset:{i*1024} sc1")
    a("s_mov_b64 exec, 0xffff")
    a(f"global_store_dword v{tmp+3}, v{tmp+4}, s[54:55] offset:{C_P} sc1")
    a("s_mov_b64 exec, 0x1ffff")
    a(f"global_store_dword v{tmp+1}, v{tmp}, s[54:55] sc1")
    a("s_mov_b64 exec, -1")
    a("s_waitcnt vmcnt(0)")
    a("s_mov_b32 s36, 2")
    a("s_atomic_or s36, s[50:51], 0x0 glc")
    a("s_waitcnt lgkmcnt(0)")
    a("s_branch L_setready")
    a.label("L_poll")
    a(f"s_mov_b32 s38, {P['SPIN']}")
    a.label("L_poll1")
    a("s_and_b32 s37, s36, 2")
    a("s_cbranch_scc1 L_setready")
    a("s_sub_u32 s38, s38, 1")
    a("s_cbranch_scc1 L_setready")
    a(f"s_sleep {P.get('PSLEEP', 4)}")
    a("s_mov_b32 s36, 0")
    a("s_atomic_or s36, s[50:51], 0x0 glc")
    a("s_waitcnt lgkmcnt(0)")
    a("s_branch L_poll1")
    a.label("L_setready")
    a(f"v_mov_b32 v{tmp}, 0")
    a(f"v_mov_b32 v{tmp+2}, 0")
    a(f"v_mov_b32 v{tmp+3}, 1")
    a("s_mov_b64 exec, 1")
    a(f"ds_add_u64 v{tmp}, v[{tmp+2}:{tmp+3}]")
    a(f"ds_add_u64 v{tmp}, v[{tmp+2}:{tmp+3}] offset:8")
    a("s_mov_b64 exec, -1")
    if P.get('CLAIMW', 0):
        a("s_setprio 0")
    a.label("L_loop0")
    if P.get("KPRIO"):
        a("s_cmp_lg_u32 s33, 0")
        a("s_cbranch_scc1 L_noprio")
        a(f"s_setprio {P['KPRIO']}")
        a.label("L_noprio")
    if P.get("PREWARM"):
        a("s_cmp_lg_u32 s34, 1")
        a("s_cbranch_scc1 L_nowarm")
        a(f"v_lshlrev_b32 v{tmp}, 21, v0")
        a(f"v_add_u32 v{tmp}, {NP*8192 + 4096}, v{tmp}")
        a("s_mov_b64 exec, 0xff")
        a(f"buffer_load_dword v{tmp+1}, v{tmp}, s[8:11], 0 offen nt")
        a("s_mov_b64 exec, -1")
        a("s_waitcnt vmcnt(0)")
        a.label("L_nowarm")
    if STAMP == 3:
        a("s_memrealtime s[72:73]")
        a("s_waitcnt vmcnt(0)")
        a("s_memrealtime s[70:71]")
        a("s_waitcnt lgkmcnt(0)")
        a(f"s_mul_i32 s36, s2, {WPB}")
        a("s_add_u32 s36, s36, s3")
        a("s_lshl_b32 s36, s36, 4")
        a("s_add_u32 s36, s36, 0x11000000")
        a("s_add_u32 s72, s28, s36")
        a("s_addc_u32 s73, s29, 0")
        a(f"v_mov_b32 v{tmp}, s40")
        a(f"v_mov_b32 v{tmp+1}, s68")
        a(f"v_mov_b32 v{tmp+2}, s70")
        a(f"v_mov_b32 v{tmp+3}, 0")
        a(f"v_mov_b32 v{tmp+4}, 0")
        a("s_mov_b64 exec, 1")
        a(f"global_store_dwordx4 v{tmp+4}, v[{tmp}:{tmp+3}], s[72:73]")
        a("s_mov_b64 exec, -1")
        a("s_waitcnt vmcnt(0)")
    if STAMP == 2:
        a("s_memrealtime s[72:73]")
        a("s_waitcnt vmcnt(0)")
        a("s_memrealtime s[70:71]")

    T4 = STAMP == 4
    stile = [74, 75, 92, 93, 94]
    def t4_after_wait(b):
        if T4:
            a("s_memrealtime s[68:69]")
            a(f"s_mov_b32 s70, s{stile[b]}")
    def t4_store():
        if T4:
            a("s_lshl_b32 s71, s70, 3")
            a("s_mov_b64 exec, 1")
            a(f"v_mov_b32 v{vT}, s68")
            a(f"v_mov_b32 v{vT1}, s69")
            a(f"buffer_store_dwordx2 v[{vT}:{vT1}], v{nvx}, s[76:79], s71 offen")
            a("s_mov_b64 exec, -1")
    def t4_set(nb):
        if T4:
            a(f"s_lshr_b32 s{stile[nb]}, s16, 13")
    if T4:
        nvx = nv
        nv += 1
        a(f"v_mov_b32 v{nvx}, 0")
        a("s_mov_b32 s70, 0x1000000")
        for b_ in range(NPRO):
            a(f"s_add_u32 s{stile[b_]}, s18, s34")
            if b_: a(f"s_add_u32 s{stile[b_]}, s{stile[b_]}, {b_*WT}")
        a("s_lshl_b32 s36, s32, 1")
        a("s_add_u32 s36, s36, s33")
        a("s_lshl_b32 s36, s36, 14")
        a("s_add_u32 s36, s36, 0x20000000")
        a("s_add_u32 s76, s28, s36")
        a("s_addc_u32 s77, s29, 0")
        a("s_and_b32 s77, s77, 0xffff")
        a("s_mov_b32 s78, 16384")
        a("s_mov_b32 s79, 0x20000")

    KSTEAL = P.get("KSTEAL", 1)
    if not KSTEAL:
        a("s_cmp_eq_u32 s33, 0")
        a(f"s_mov_b32 s95, {TW-WT}")
        a(f"s_cselect_b32 s95, s95, {NP-WT}")

    def grab_lds():
        a("s_mov_b64 exec, 1")
        a(f"ds_add_rtn_u64 v[{vT}:{vT1}], v{vCnt}, v[{vOne64}:{vOne64+1}]")
        a("s_mov_b64 exec, -1")

    def grab_pool():
        a("s_mov_b32 s23, 1")
        a("s_atomic_add s23, s[52:53], s58 glc")

    if PRE:
        a("s_branch L_p1m_0")
    for b in range(NB):
        nb = (b + NB - 1) % NB
        a.label(f"L_p1_{b}")
        grab_lds()
        a("s_waitcnt lgkmcnt(0)")
        a(f"v_readfirstlane_b32 s19, v{vT}")
        a(f"v_readfirstlane_b32 s22, v{vT1}")
        a("s_nop 2")
        if ROT:
            a("s_add_u32 s36, s19, s31")
            a(f"s_cmp_ge_u32 s36, {NP}")
            a(f"s_cselect_b32 s37, {NP}, 0")
            a("s_sub_u32 s36, s36, s37")
            a("s_add_u32 s36, s36, s18")
        else:
            a("s_add_u32 s36, s18, s19")
        a("s_lshl_b32 s16, s36, 13")
        a("s_lshl_b32 s17, s36, 6")
        if KSTEAL:
            a(f"s_cmp_ge_u32 s19, {NP-WT}")
        else:
            a("s_cmp_ge_u32 s19, s95")
        a(f"s_cbranch_scc1 L_sw_{b}")
        t4_store()
        t4_set(nb)
        loads(nb)
        if b == 0:
            a.label("L_p1m_0")
        a(f"s_waitcnt vmcnt({(L+1)*(NB-1)-1 if T4 else L*(NB-1)})")
        t4_after_wait(b)
        compute(b)
    a("s_branch L_p1_0")
    for b in range(NB):
        a.label(f"L_sw_{b}")
        if not KSTEAL:
            a("s_cmp_lg_u32 s33, 0")
            a(f"s_cbranch_scc1 L_swv_{b}")
            a("s_mov_b32 s80, 0")
            a("s_mov_b32 s82, 0")
            a("s_mov_b32 s23, -1")
            a(f"s_branch L_p2m_{b}")
            a.label(f"L_swv_{b}")
        a("s_cmp_lg_u32 s22, 0")
        a(f"s_cbranch_scc1 L_swok_{b}")
        a.label(f"L_swspin_{b}")
        a("s_sleep 4")
        a(f"ds_read_b64 v[{vT}:{vT1}], v{vCnt}")
        a("s_waitcnt lgkmcnt(0)")
        a(f"v_readfirstlane_b32 s22, v{vT1}")
        a("s_nop 2")
        a("s_cmp_eq_u32 s22, 0")
        a(f"s_cbranch_scc1 L_swspin_{b}")
        a.label(f"L_swok_{b}")
        a("s_lshl_b32 s58, s30, 2")
        a(f"s_add_u32 s59, s18, {NP}")
        a(f"s_mov_b32 s80, {P['RETRY']}")
        a("s_mov_b32 s82, 0")
        grab_pool()
        a(f"s_branch L_p2m_{b}")
    for b in range(NB):
        nb = (b + NB - 1) % NB
        a.label(f"L_p2_{b}")
        a("s_cmp_lg_u32 s82, 0")
        a(f"s_cbranch_scc1 L_p2c_{b}")
        a("s_waitcnt lgkmcnt(0)")
        a(f"s_cmp_ge_u32 s23, {NT}")
        a(f"s_cbranch_scc1 L_st_{b}")
        J = 0; O = 0
        if P.get("ILVT", 1):
            for k, (c, z) in enumerate(sched):
                off = (O - J) & 0xffffffff
                if k == 0:
                    a(f"s_mov_b32 s82, {z}")
                    a(f"s_mov_b32 s37, {off}")
                    a(f"s_mov_b32 s83, {c}")
                else:
                    a(f"s_cmp_ge_u32 s23, {J}")
                    a(f"s_cselect_b32 s82, {z}, s82")
                    a(f"s_cselect_b32 s37, {off}, s37")
                    if c != sched[k-1][0] and z > 1:
                        a(f"s_cselect_b32 s83, {c}, s83")
                J += c; O += c * z
            a("s_add_u32 s81, s23, s37")
            a("s_add_u32 s81, s81, s59")
        else:
            for k, (c, z) in enumerate(sched):
                lz = z.bit_length() - 1
                assert 1 << lz == z
                off = (O - (J << lz)) & 0xffffffff
                if k == 0:
                    a(f"s_mov_b32 s36, {lz}")
                    a(f"s_mov_b32 s37, {off}")
                else:
                    a(f"s_cmp_ge_u32 s23, {J}")
                    a(f"s_cselect_b32 s36, {lz}, s36")
                    a(f"s_cselect_b32 s37, {off}, s37")
                J += c; O += c * z
            a("s_lshl_b32 s81, s23, s36")
            a("s_add_u32 s81, s81, s37")
            a("s_add_u32 s81, s81, s59")
            a("s_lshl_b32 s82, 1, s36")
            a("s_mov_b32 s83, 1")
        EARLY = P.get("EARLY", 0)
        if EARLY == 1:
            grab_pool()
        if EARLY == 2:
            a("s_cmp_lg_u32 s82, 1")
            a(f"s_cbranch_scc1 L_p2c_{b}")
            grab_pool()
        a.label(f"L_p2c_{b}")
        a("s_lshl_b32 s16, s81, 13")
        a("s_lshl_b32 s17, s81, 6")
        a("s_add_u32 s81, s81, s83")
        a("s_sub_u32 s82, s82, 1")
        if EARLY == 0:
            a("s_cmp_lg_u32 s82, 0")
            a(f"s_cbranch_scc1 L_p2m_{b}")
            grab_pool()
        if EARLY == 2:
            a("s_cmp_lg_u32 s82, 1")
            a(f"s_cbranch_scc1 L_p2m_{b}")
            grab_pool()
        a.label(f"L_p2m_{b}")
        if T4:
            a("s_waitcnt lgkmcnt(0)") if False else None
        t4_store()
        t4_set(nb)
        loads(nb)
        a(f"s_waitcnt vmcnt({(L+1)*(NB-1)-1 if T4 else L*(NB-1)})")
        t4_after_wait(b)
        compute(b)
    a("s_branch L_p2_0")
    for b in range(NB):
        a.label(f"L_st_{b}")
        a("s_cmp_eq_u32 s80, 0")
        a(f"s_cbranch_scc1 L_dr_{b}")
        a("s_sub_u32 s80, s80, 1")
        a("s_load_dwordx8 s[84:91], s[52:53], 0x0 glc")
        a("s_waitcnt lgkmcnt(0)")
        a("s_mov_b32 s36, s84")
        a("s_mov_b32 s37, 0")
        for x in range(1, NX):
            a(f"s_cmp_lt_u32 s{84+x}, s36")
            a(f"s_cselect_b32 s36, s{84+x}, s36")
            a(f"s_cselect_b32 s37, {x}, s37")
        a(f"s_cmp_ge_u32 s36, {NT}")
        a(f"s_cbranch_scc1 L_dr_{b}")
        a("s_lshl_b32 s58, s37, 2")
        a(f"s_mul_i32 s59, s37, {TW}")
        a(f"s_add_u32 s59, s59, {NP}")
        grab_pool()
        a(f"s_branch L_p2_{b}")
    for b in range(NB):
        a.label(f"L_dr_{b}")
        a(f"buffer_load_dwordx4 v[{AUX}:{AUX+3}], v{vAuxOff}, s[64:67], 0 offen sc1")
        for k in range(NB - 1):
            a(f"s_waitcnt vmcnt({L*(NB-2-k)+1})")
            compute((b + k) % NB)
        if b + 1 < NB:
            a("s_branch L_loopdone")
    a.label("L_loopdone")
    if STAMP:
        a("s_memrealtime s[42:43]")
        a("s_waitcnt lgkmcnt(0)")
        a("v_mov_b32 v4, s42")
        a("v_mov_b32 v5, 96")
        a("s_mov_b64 exec, 1")
        a("ds_max_u32 v5, v4")
        a("s_mov_b64 exec, -1")
    a("v_and_b32 v4, 15, v0")
    a("v_lshrrev_b32 v5, 4, v0")
    a("s_cmp_lg_u32 s33, 0")
    a("s_cbranch_scc1 L_vend")
    if P.get("KMIMIC", 0):
        L_KP = 8192
        WS_KP = 1 << 20
        a("s_lshl_b32 s36, s34, 13")
        a("v_lshlrev_b32 v6, 4, v0")
        a("v_add_u32 v7, s36, v6")
        a("s_nop 7")
        for dd in range(8):
            a(f"ds_write_b128 v7, v[{acc+4*dd}:{acc+4*dd+3}] offset:{L_KP + dd*1024}")
        a("s_waitcnt lgkmcnt(0)")
        a("s_mov_b64 exec, 1")
        a(f"v_mov_b32 v8, {L_KC}")
        a("v_mov_b32 v9, 1")
        a("ds_add_rtn_u32 v9, v8, v9")
        a("s_mov_b64 exec, -1")
        a("s_waitcnt lgkmcnt(0)")
        a("v_readfirstlane_b32 s36, v9")
        a("s_nop 3")
        a(f"s_cmp_lg_u32 s36, {WT-1}")
        a("s_cbranch_scc1 L_fin")
        a("s_lshl_b32 s36, s32, 16")
        a(f"s_add_u32 s36, s36, {WS_KP}")
        a("s_add_u32 s8, s28, s36")
        a("s_addc_u32 s9, s29, 0")
        a("s_and_b32 s9, s9, 0xffff")
        a("s_mov_b32 s10, 65536")
        a("s_mov_b32 s11, 0x20000")
        a("s_lshl_b32 s37, s30, 13")
        for dd in range(8):
            for w in range(WT):
                a(f"ds_read_b128 v[{20+4*w}:{23+4*w}], v6 offset:{L_KP + w*8192 + dd*1024}")
            for w in range(1, WT):
                a(f"s_waitcnt lgkmcnt({WT-1-w})")
                for i in range(4):
                    if w == 1:
                        a(f"v_add_f32 v{acc+4*dd+i}, v{20+i}, v{24+i}")
                    else:
                        a(f"v_add_f32 v{acc+4*dd+i}, v{acc+4*dd+i}, v{20+4*w+i}")
            a(f"buffer_store_dwordx4 v[{acc+4*dd}:{acc+4*dd+3}], v6, s[8:11], s37 offen sc1")
            if dd < 7:
                a("s_add_u32 s37, s37, 1024")
        a("s_waitcnt vmcnt(0)")
        a("s_mov_b32 s36, 1")
        a(f"s_atomic_add s36, s[54:55], {C_KARR} glc")
        a("s_waitcnt lgkmcnt(0)")
        a(f"s_cmp_lg_u32 s36, {NX-1}")
        a("s_cbranch_scc1 L_fin")
        Q = 8
        for j in range(4):
            a(f"v_lshlrev_b32 v{Q+2*j}, 16, v{AUX+j}")
            a(f"v_and_b32 v{Q+2*j+1}, 0xffff0000, v{AUX+j}")
        T = 16
        LB = 20
        for half in range(4):
            for d2 in range(2):
                dd = half * 2 + d2
                for x in range(NX):
                    a(f"s_mov_b32 s37, {x*8192 + dd*1024}")
                    rr = LB + (d2 * NX + x) * 4
                    a(f"buffer_load_dwordx4 v[{rr}:{rr+3}], v6, s[8:11], s37 offen sc1")
            for d2 in range(2):
                dd = half * 2 + d2
                rr = LB + d2 * NX * 4
                a(f"s_waitcnt vmcnt({NX if d2 == 0 else 0})")
                for x in range(1, NX):
                    for i in range(4):
                        a(f"v_add_f32 v{rr+i}, v{rr+i}, v{rr+4*x+i}")
                a(f"v_cvt_pk_bf16_f32 v{rr+4}, v{rr}, v{rr+1}")
                a(f"v_cvt_pk_bf16_f32 v{rr+5}, v{rr+2}, v{rr+3}")
                a(f"v_lshlrev_b32 v{rr}, 16, v{rr+4}")
                a(f"v_and_b32 v{rr+1}, 0xffff0000, v{rr+4}")
                a(f"v_lshlrev_b32 v{rr+2}, 16, v{rr+5}")
                a(f"v_and_b32 v{rr+3}, 0xffff0000, v{rr+5}")
                for i in range(4):
                    if dd == 0:
                        a(f"v_mul_f32 v{T+i}, v{Q}, v{rr+i}")
                    else:
                        a(f"v_fmac_f32 v{T+i}, v{Q+dd}, v{rr+i}")
        for sh in (8, 4, 2, 1):
            a("s_nop 1")
            for i in range(4):
                a(f"v_add_f32_dpp v{T+i}, v{T+i}, v{T+i} row_ror:{sh} row_mask:0xf bank_mask:0xf")
        a("v_lshlrev_b32 v6, 4, v5")
        a("v_cmp_eq_u32 vcc, 0, v4")
        a("s_and_saveexec_b64 s[48:49], vcc")
        a(f"ds_write_b128 v6, v[{T}:{T+3}] offset:{L_SK}")
        a("s_mov_b64 exec, s[48:49]")
        a("v_lshlrev_b32 v6, 2, v4")
        a("s_waitcnt lgkmcnt(0)")
        a(f"ds_read_b32 v8, v6 offset:{L_SK}")
        a("s_waitcnt lgkmcnt(0)")
    else:
        a("s_waitcnt vmcnt(0)")
        Q = 8
        for j in range(4):
            a(f"v_lshlrev_b32 v{Q+2*j}, 16, v{AUX+j}")
            a(f"v_and_b32 v{Q+2*j+1}, 0xffff0000, v{AUX+j}")
        T = 16
        for i in range(4):
            a(f"v_mul_f32 v{T+i}, v{Q}, v{acc+i}")
        for dd in range(1, 8):
            for i in range(4):
                a(f"v_fmac_f32 v{T+i}, v{Q+dd}, v{acc+4*dd+i}")
        for sh in (8, 4, 2, 1):
            a("s_nop 1")
            for i in range(4):
                a(f"v_add_f32_dpp v{T+i}, v{T+i}, v{T+i} row_ror:{sh} row_mask:0xf bank_mask:0xf")
        a("v_lshlrev_b32 v6, 4, v5")
        a("v_cmp_eq_u32 vcc, 0, v4")
        a("s_and_saveexec_b64 s[48:49], vcc")
        for i in range(4):
            a(f"ds_add_f32 v6, v{T+i} offset:{L_SK + 4*i}")
        a("s_mov_b64 exec, 1")
        a(f"v_mov_b32 v6, {L_KC}")
        a("v_mov_b32 v7, 1")
        a("ds_add_rtn_u32 v7, v6, v7")
        a("s_mov_b64 exec, -1")
        a("s_waitcnt lgkmcnt(0)")
        a("v_readfirstlane_b32 s36, v7")
        a("s_nop 3")
        a(f"s_cmp_lg_u32 s36, {WT-1}")
        a("s_cbranch_scc1 L_fin")
        a("v_lshlrev_b32 v6, 2, v4")
        a(f"ds_read_b32 v7, v6 offset:{L_SK}")
        a("s_lshl_b32 s36, s30, 6")
        a("v_add_u32 v6, s36, v6")
        a("s_waitcnt lgkmcnt(0)")
        a("s_mov_b64 exec, 0xffff")
        a(f"global_store_dword v6, v7, s[54:55] offset:{C_KS} sc1")
        a("s_mov_b64 exec, -1")
        a("s_waitcnt vmcnt(0)")
        a("s_mov_b32 s36, 1")
        a(f"s_atomic_add s36, s[54:55], {C_KARR} glc")
        a("s_waitcnt lgkmcnt(0)")
        a(f"s_cmp_lg_u32 s36, {NX-1}")
        a("s_cbranch_scc1 L_fin")
        a("v_lshlrev_b32 v6, 2, v0")
        a(f"global_load_dword v8, v6, s[54:55] offset:{C_KS} sc1")
        a(f"global_load_dword v9, v6, s[54:55] offset:{C_KS+256} sc1")
        a("v_xor_b32 v6, 16, v0")
        a("v_lshlrev_b32 v6, 2, v6")
        a("v_xor_b32 v7, 32, v0")
        a("v_lshlrev_b32 v7, 2, v7")
        a("s_waitcnt vmcnt(0)")
        a("v_add_f32 v8, v8, v9")
        a("ds_bpermute_b32 v9, v6, v8")
        a("s_waitcnt lgkmcnt(0)")
        a("v_add_f32 v8, v8, v9")
        a("ds_bpermute_b32 v9, v7, v8")
        a("s_waitcnt lgkmcnt(0)")
        a("v_add_f32 v8, v8, v9")
    a("v_cvt_pk_bf16_f32 v8, v8, v8")
    a("v_lshlrev_b32 v8, 16, v8")
    a("v_mul_f32 v8, 0x3db504f3, v8")
    a("v_cvt_pk_bf16_f32 v8, v8, v8")
    a("v_lshlrev_b32 v8, 16, v8")
    a("v_mov_b32 v9, v8")
    for sh in (8, 4, 2, 1):
        a("s_nop 1")
        a(f"v_max_f32_dpp v9, v9, v9 row_ror:{sh} row_mask:0xf bank_mask:0xf")
    a("v_sub_f32 v8, v8, v9")
    a("v_mul_f32 v8, 0x3fb8aa3b, v8")
    a("v_exp_f32 v8, v8")
    a("s_nop 0")
    a("v_mov_b32 v9, v8")
    for sh in (8, 4, 2, 1):
        a("s_nop 1")
        a(f"v_add_f32_dpp v9, v9, v9 row_ror:{sh} row_mask:0xf bank_mask:0xf")
    a("v_rcp_f32 v9, v9")
    a("s_nop 0")
    a("v_mul_f32 v8, v8, v9")
    a("v_cvt_pk_bf16_f32 v8, v8, v8")
    a("v_lshlrev_b32 v8, 16, v8")
    a("v_lshlrev_b32 v6, 2, v4")
    a("s_mov_b64 exec, 0xffff")
    a(f"global_store_dword v6, v8, s[54:55] offset:{C_P} sc1")
    a("s_branch L_fin")
    a.label("L_vend")
    a(f"s_mov_b32 s36, {P['SPIN']}")
    a.label("L_pchk")
    a("s_waitcnt vmcnt(0)")
    a(f"v_cmp_eq_u32 vcc, -1, v{AUX}")
    a(f"v_cmp_eq_u32 s[48:49], -1, v{AUX+1}")
    a("s_or_b64 vcc, vcc, s[48:49]")
    a(f"v_cmp_eq_u32 s[48:49], -1, v{AUX+2}")
    a("s_or_b64 vcc, vcc, s[48:49]")
    a(f"v_cmp_eq_u32 s[48:49], -1, v{AUX+3}")
    a("s_or_b64 vcc, vcc, s[48:49]")
    a("s_cbranch_vccz L_pok")
    a("s_sub_u32 s36, s36, 1")
    a("s_cbranch_scc1 L_pok")
    a(f"s_sleep {120 if P.get('SWAPT') else 8}")
    a(f"buffer_load_dwordx4 v[{AUX}:{AUX+3}], v{vAuxOff}, s[64:67], 0 offen sc1")
    a("s_branch L_pchk")
    a.label("L_pok")
    if STAMP:
        a("s_memrealtime s[42:43]")
        a("s_waitcnt lgkmcnt(0)")
        a("v_mov_b32 v6, s42")
        a("v_mov_b32 v7, 100")
        a("s_mov_b64 exec, 1")
        a("ds_max_u32 v7, v6")
        a("s_mov_b64 exec, -1")
    O = 8
    for dd in range(8):
        a(f"v_mul_f32 v{O+dd}, v{AUX}, v{acc+4*dd}")
    for i in range(1, 4):
        for dd in range(8):
            a(f"v_fmac_f32 v{O+dd}, v{AUX+i}, v{acc+4*dd+i}")
    a("s_nop 1")
    a(f"v_permlane32_swap_b32 v{O+0}, v{O+4}")
    a(f"v_permlane32_swap_b32 v{O+2}, v{O+6}")
    a(f"v_permlane32_swap_b32 v{O+1}, v{O+5}")
    a(f"v_permlane32_swap_b32 v{O+3}, v{O+7}")
    a("s_nop 1")
    a(f"v_add_f32 v{O+0}, v{O+0}, v{O+4}")
    a(f"v_add_f32 v{O+2}, v{O+2}, v{O+6}")
    a(f"v_add_f32 v{O+1}, v{O+1}, v{O+5}")
    a(f"v_add_f32 v{O+3}, v{O+3}, v{O+7}")
    a("s_nop 1")
    a(f"v_permlane16_swap_b32 v{O+0}, v{O+2}")
    a(f"v_permlane16_swap_b32 v{O+1}, v{O+3}")
    a("s_nop 1")
    a(f"v_add_f32 v{O+0}, v{O+0}, v{O+2}")
    a(f"v_add_f32 v{O+1}, v{O+1}, v{O+3}")
    a("v_lshlrev_b32 v6, 3, v0")
    a("s_lshl_b32 s36, s34, 9")
    a("v_add_u32 v7, s36, v6")
    a(f"ds_write_b64 v7, v[{O}:{O+1}] offset:{L_OL}")
    a("s_waitcnt lgkmcnt(0)")
    a("s_barrier")
    if STAMP:
        a("s_memrealtime s[44:45]")
    a(f"s_cmp_lg_u32 s3, {FW}")
    a("s_cbranch_scc1 L_fin")
    for w in range(WT):
        a(f"ds_read_b64 v[{10+2*w}:{11+2*w}], v6 offset:{L_OL + 512*w}")
    for w in range(WT):
        a(f"s_waitcnt lgkmcnt({WT-1-w})")
        if w == 0:
            a("v_mov_b32 v8, v10")
            a("v_mov_b32 v9, v11")
        else:
            a(f"v_add_f32 v8, v8, v{10+2*w}")
            a(f"v_add_f32 v9, v9, v{11+2*w}")
    a("s_cmp_eq_u32 s30, 0")
    a("s_cbranch_scc1 L_final")
    a("v_mov_b32 v10, 0x7fc00000")
    a("v_cmp_eq_u32 vcc, -1, v8")
    a("v_cmp_eq_u32 s[48:49], -1, v9")
    a("s_lshl_b32 s36, s30, 9")
    a("v_add_u32 v6, s36, v6")
    a("v_cndmask_b32 v8, v8, v10, vcc")
    a("v_cndmask_b32 v9, v9, v10, s[48:49]")
    a(f"global_store_dwordx2 v6, v[8:9], s[54:55] offset:{C_O} sc1")
    a("s_branch L_fin")
    a.label("L_final")
    a(f"v_add_u32 v6, {C_O}, v6")
    a(f"s_mov_b32 s36, {P['SPIN']}")
    a.label("L_opoll")
    for x in range(1, NX):
        a(f"global_load_dwordx2 v[{10+2*x}:{11+2*x}], v6, s[54:55] offset:{x*512} sc1")
    a("s_waitcnt vmcnt(0)")
    a(f"v_cmp_eq_u32 vcc, -1, v12")
    for r in range(13, 10 + 2 * NX):
        a(f"v_cmp_eq_u32 s[48:49], -1, v{r}")
        a("s_or_b64 vcc, vcc, s[48:49]")
    a("s_cbranch_vccz L_ook")
    a("s_sub_u32 s36, s36, 1")
    a("s_cbranch_scc1 L_ook")
    a("s_sleep 2")
    a("s_branch L_opoll")
    a.label("L_ook")
    for x in range(1, NX):
        a(f"v_add_f32 v8, v8, v{10+2*x}")
        a(f"v_add_f32 v9, v9, v{11+2*x}")
    a("v_cvt_pk_bf16_f32 v8, v8, v9")
    a("s_lshl_b32 s36, s32, 8")
    a("s_add_u32 s12, s60, s36")
    a("s_addc_u32 s13, s61, 0")
    a("s_and_b32 s13, s13, 0xffff")
    a("s_mov_b32 s14, 256")
    a("s_mov_b32 s15, 0x20000")
    a("v_lshlrev_b32 v6, 4, v4")
    a("v_lshl_add_u32 v6, v5, 2, v6")
    a("buffer_store_dword v8, v6, s[12:15], 0 offen")
    a.label("L_fin")
    if STAMP:
        a(f"s_cmp_lg_u32 s3, {FW}")
        a("s_cbranch_scc1 L_done")
        a("s_waitcnt vmcnt(0)")
        a("s_memrealtime s[46:47]")
        a("s_getreg_b32 s37, hwreg(HW_REG_XCC_ID)")
        a("s_waitcnt lgkmcnt(0)")
        a("s_lshl_b32 s36, s2, 5")
        a("s_add_u32 s36, s36, 0x10000000")
        a("s_add_u32 s8, s28, s36")
        a("s_addc_u32 s9, s29, 0")
        a("s_and_b32 s9, s9, 0xffff")
        a("s_mov_b32 s10, 32")
        a("s_mov_b32 s11, 0x20000")
        a("v_mov_b32 v9, 96")
        a("ds_read_b64 v[10:11], v9")
        a("v_mov_b32 v4, s40")
        a("v_mov_b32 v6, s44")
        a("v_mov_b32 v7, s46")
        a("v_mov_b32 v8, s37")
        a("s_waitcnt lgkmcnt(0)")
        a("v_mov_b32 v5, v10")
        a("v_mov_b32 v9, v11")
        if STAMP == 2:
            a("v_mov_b32 v5, s68")
            a("v_mov_b32 v6, s72")
            a("v_mov_b32 v7, s70")
            a("v_mov_b32 v9, 0")
        a("buffer_store_dword v9, v12, s[8:11], 0 offen offset:20") if False else None
        a("v_mov_b32 v12, 0")
        a("s_mov_b64 exec, 1")
        a("buffer_store_dwordx4 v[4:7], v12, s[8:11], 0 offen")
        a("buffer_store_dwordx2 v[8:9], v12, s[8:11], 0 offen offset:16")
    a.label("L_done")
    a("s_endpgm")
    lds = P["LDS"]
    hdr = HDR + f"; @launch grid=({NWG},1,1) block=({WPB*64},1,1) lds={lds}\n"
    return hdr + '.amdgcn_target "amdgcn-amd-amdhsa--gfx950"\n.text\n' + a.text() + desc(KN, nv, 96)


DEF = dict(WPB=16, NX=8, NB=2, SCHED="8x8,8x4,8x2,16x1", KFLAGS="nt", SPIN=100000, LDS=98304, RETRY=24)

if __name__ == "__main__":
    P = dict(DEF)
    out = sys.argv[1]
    for kv in sys.argv[2:]:
        k, v = kv.split("=")
        try:
            v = int(v)
        except ValueError:
            v = v.replace("+", " ")
        P[k] = v
    open(out, "w").write(gen(P))
    print("wrote", out, P)
```

```python
import sys, re
from gen2 import A, desc, HDR, KN, ROW_E


WS_CTL = 0
C_POOL = 0
C_KARR = 512
C_P = 1024
C_KS = 1536
C_O = 2048
L_KC = 16
L_SK = 32
L_OL = 128


DOC = """;
;
"""

def gen(P):
    a = A()
    WPB, NX, NB = P["WPB"], P["NX"], P["NB"]
    sched = [tuple(int(v) for v in seg.split("x")) for seg in P["SCHED"].split(",")]
    S = sum(c * z for c, z in sched)
    NT = sum(c for c, z in sched)
    kfl = " " + P["KFLAGS"] if P["KFLAGS"] else ""
    WT = WPB // 2
    NR = 65536 // NX
    TW = NR // 32
    NP = TW - S
    NPOOL = NX * S
    NWG = 32 * NX
    loglx = NX.bit_length() - 1
    L = 9
    vOffK, vOffE = 1, 2
    base = 4
    buf = [base + 36 * b for b in range(NB)]
    tmp = base + 36 * NB
    acc = tmp + 8
    nv = acc + 32
    vT, vT1, vCnt, vAuxOff = nv, nv + 1, nv + 2, nv + 3
    assert vT % 2 == 0
    vOne64 = nv + 4
    AUX = nv + 6
    nv += 10
    STAMP = P.get("STAMP", 0)
    FW = 1 if P.get("ILVW") else (0 if P.get("SWAPT") else WT)
    assert NX == 8
    assert NP >= NB * WT + WT

    a.raw(f".globl {KN}\n.p2align 8\n.type {KN},@function\n{KN}:")
    a(f"s_cmp_ge_u32 s2, {NWG}")
    a("s_cbranch_scc1 L_done")
    a("s_load_dwordx4 s[4:7], s[0:1], 8")
    a("s_load_dwordx4 s[24:27], s[0:1], 24")
    if STAMP:
        a("s_memrealtime s[40:41]")
    a("v_lshrrev_b32 v3, 6, v0")
    a("v_and_b32 v0, 63, v0")
    a("v_readfirstlane_b32 s3, v3")
    a("v_lshrrev_b32 v3, 4, v0")
    a("v_and_b32 v2, 15, v0")
    a("v_lshlrev_b32 v1, 11, v3")
    a("v_lshl_add_u32 v1, v2, 4, v1")
    a("v_lshlrev_b32 v2, 17, v2")
    a("v_lshl_add_u32 v2, v3, 4, v2")
    a(f"s_and_b32 s30, s2, {NX-1}")
    a(f"s_lshr_b32 s32, s2, {loglx}")
    if P.get("ILVW"):
        a("s_and_b32 s33, s3, 1")
        a("s_lshr_b32 s34, s3, 1")
    else:
        a(f"s_lshr_b32 s33, s3, {WT.bit_length()-1}")
        if P.get("SWAPT"):
            a("s_xor_b32 s33, s33, 1")
        a(f"s_and_b32 s34, s3, {WT-1}")
    a("s_lshl_b32 s35, s32, 24")
    a(f"s_mul_i32 s18, s30, {TW}")
    a("s_mov_b32 s10, 0x1000000")
    a("s_mov_b32 s11, 0x20000")
    a("s_mov_b32 s14, 0x200000")
    a("s_mov_b32 s15, 0x20000")
    ROT = P.get("ROT", 0)
    if ROT:
        a(f"s_mul_i32 s31, s32, {ROT}")
        if P.get("ROTX"):
            a(f"s_mul_i32 s36, s30, {P['ROTX']}")
            a("s_add_u32 s31, s31, s36")
        for _ in range(2):
            a(f"s_cmp_ge_u32 s31, {NP}")
            a(f"s_cselect_b32 s36, {NP}, 0")
            a("s_sub_u32 s31, s31, s36")
        a("s_add_u32 s19, s31, s34")
        a(f"s_cmp_ge_u32 s19, {NP}")
        a(f"s_cselect_b32 s36, {NP}, 0")
        a("s_sub_u32 s19, s19, s36")
        a("s_add_u32 s19, s19, s18")
        assert NB == 2
    else:
        a("s_add_u32 s19, s18, s34")
    a("s_lshl_b32 s16, s19, 13")
    a("s_lshl_b32 s17, s19, 6")
    a("s_cmp_eq_u32 s33, 0")
    a("s_waitcnt lgkmcnt(0)")
    if STAMP == 2:
        a("s_memrealtime s[68:69]")
    a("s_cselect_b32 s8, s4, s6")
    a("s_cselect_b32 s9, s5, s7")
    a("s_cselect_b32 s12, s24, s26")
    a("s_cselect_b32 s13, s25, s27")
    a("s_add_u32 s8, s8, s35")
    a("s_addc_u32 s9, s9, 0")
    a("s_and_b32 s9, s9, 0xffff")
    a("s_and_b32 s13, s13, 0xffff")

    def loads(b):
        r = buf[b]
        for j in range(8):
            a(f"buffer_load_dwordx4 v[{r+4*j}:{r+4*j+3}], v{vOffK}, s[8:11], s16 offen offset:{j*256}{kfl}")
        a(f"buffer_load_dwordx4 v[{r+32}:{r+35}], v{vOffE}, s[12:15], s17 offen")

    def compute(b):
        r = buf[b]
        def perm(dd):
            i, h = dd >> 1, dd & 1
            t = tmp + 4 * (dd & 1)
            for p in range(4):
                a(f"v_perm_b32 v{t+p}, v{r+4*(2*p+1)+i}, v{r+4*(2*p)+i}, s{20+h}")
        def mfma(dd):
            t = tmp + 4 * (dd & 1)
            a(f"v_mfma_f32_16x16x32_bf16 v[{acc+4*dd}:{acc+4*dd+3}], v[{r+32}:{r+35}], v[{t}:{t+3}], v[{acc+4*dd}:{acc+4*dd+3}]")
        perm(0); perm(1)
        for dd in range(7):
            mfma(dd)
            if dd + 2 < 8:
                perm(dd + 2)
        a("s_nop 1")
        mfma(7)

    PRE = P.get("PRE", 0)
    NPRO = NB if PRE else NB - 1
    def prologue():
        for b in range(NPRO):
            loads(b)
            if b + 1 < NPRO:
                a(f"s_add_u32 s16, s16, {WT*8192}")
                a(f"s_add_u32 s17, s17, {WT*64}")
    VLATE = P.get("VLATE", 0)
    if VLATE:
        a("s_cmp_lg_u32 s33, 0")
        a("s_cbranch_scc1 L_nopro")
        prologue()
        a.label("L_nopro")
    else:
        prologue()
    if STAMP == 3:
        a("s_memrealtime s[68:69]")
    a("s_load_dwordx2 s[56:57], s[0:1], 0")
    a("s_load_dwordx4 s[60:63], s[0:1], 40")
    a("s_load_dwordx2 s[28:29], s[0:1], 56")
    a("s_mov_b32 s20, 0x05040100")
    a("s_mov_b32 s21, 0x07060302")
    a("s_cmp_lg_u32 s3, 0")
    a("s_cbranch_scc1 L_noinit")
    a(f"v_lshlrev_b32 v3, 4, v0")
    for i in range(4):
        a(f"v_mov_b32 v{tmp+i}, 0")
    a(f"ds_write_b128 v3, v[{tmp}:{tmp+3}]")
    a(f"v_mov_b32 v{tmp+4}, {NPRO*WT}")
    a(f"v_mov_b32 v{tmp+5}, 0")
    a(f"v_mov_b32 v{tmp+6}, {NPRO*WT}")
    a(f"v_mov_b32 v{tmp+7}, 0")
    a(f"v_mov_b32 v{vT}, 0")
    a(f"ds_write_b128 v{vT}, v[{tmp+4}:{tmp+7}]")
    a.label("L_noinit")
    a(f"s_lshl_b32 s36, s33, 3")
    a(f"v_mov_b32 v{vCnt}, s36")
    a(f"v_mov_b32 v{vOne64}, 1")
    a(f"v_mov_b32 v{vOne64+1}, 0")
    a(f"v_and_b32 v{vAuxOff}, 15, v0")
    a(f"v_lshrrev_b32 v3, 4, v0")
    a("s_cmp_eq_u32 s33, 0")
    a("s_cselect_b64 vcc, -1, 0")
    a(f"v_cndmask_b32 v{vAuxOff}, v3, v{vAuxOff}, vcc")
    a(f"v_lshlrev_b32 v{vAuxOff}, 4, v{vAuxOff}")
    for i in range(32):
        a(f"v_mov_b32 v{acc+i}, 0")
    a("s_waitcnt lgkmcnt(0)")
    a("s_lshl_b32 s36, s32, 13")
    a("s_add_u32 s54, s28, s36")
    a("s_addc_u32 s55, s29, 0")
    a("s_lshl_b32 s36, s33, 8")
    a("s_add_u32 s52, s54, s36")
    a("s_addc_u32 s53, s55, 0")
    a("s_lshl_b32 s36, s32, 8")
    a("s_add_u32 s36, s56, s36")
    a("s_addc_u32 s37, s57, 0")
    a(f"s_add_u32 s38, s54, {C_P}")
    a("s_addc_u32 s39, s55, 0")
    a("s_cmp_eq_u32 s33, 0")
    a("s_cselect_b32 s64, s36, s38")
    a("s_cselect_b32 s65, s37, s39")
    a("s_cselect_b32 s66, 256, 64")
    a("s_and_b32 s65, s65, 0xffff")
    a("s_mov_b32 s67, 0x20000")
    a("s_barrier")
    if VLATE:
        a("s_cmp_eq_u32 s33, 0")
        a("s_cbranch_scc1 L_nopro2")
        prologue()
        a.label("L_nopro2")
    a(f"s_cmp_lg_u32 s3, {P.get('CLAIMW', 0)}")
    a("s_cbranch_scc1 L_loop0")
    if P.get('CLAIMW', 0):
        a("s_setprio 3")
    a("s_lshl_b32 s36, s32, 3")
    a("s_add_u32 s50, s62, s36")
    a("s_addc_u32 s51, s63, 0")
    a("s_mov_b32 s36, 1")
    a("s_atomic_or s36, s[50:51], 0x0 glc")
    a("s_waitcnt lgkmcnt(0)")
    a("s_and_b32 s37, s36, 1")
    a("s_cbranch_scc1 L_poll")
    a(f"v_mov_b32 v{tmp}, 0")
    a(f"v_lshrrev_b32 v{tmp+1}, 3, v0")
    a(f"v_lshlrev_b32 v{tmp+1}, 8, v{tmp+1}")
    a(f"v_and_b32 v{tmp+2}, 7, v0")
    a(f"v_lshl_add_u32 v{tmp+1}, v{tmp+2}, 2, v{tmp+1}")
    for i in range(4):
        a(f"v_mov_b32 v{tmp+4+i}, -1")
    a(f"v_lshlrev_b32 v{tmp+2}, 4, v0")
    a(f"v_lshlrev_b32 v{tmp+3}, 2, v0")
    a(f"v_add_u32 v{vT}, {C_O}, v{tmp+2}")
    for i in range(4):
        a(f"global_store_dwordx4 v{vT}, v[{tmp+4}:{tmp+7}], s[54:55] offset:{i*1024} sc1")
    a("s_mov_b64 exec, 0xffff")
    a(f"global_store_dword v{tmp+3}, v{tmp+4}, s[54:55] offset:{C_P} sc1")
    a("s_mov_b64 exec, 0x1ffff")
    a(f"global_store_dword v{tmp+1}, v{tmp}, s[54:55] sc1")
    a("s_mov_b64 exec, -1")
    a("s_waitcnt vmcnt(0)")
    a("s_mov_b32 s36, 2")
    a("s_atomic_or s36, s[50:51], 0x0 glc")
    a("s_waitcnt lgkmcnt(0)")
    a("s_branch L_setready")
    a.label("L_poll")
    a(f"s_mov_b32 s38, {P['SPIN']}")
    a.label("L_poll1")
    a("s_and_b32 s37, s36, 2")
    a("s_cbranch_scc1 L_setready")
    a("s_sub_u32 s38, s38, 1")
    a("s_cbranch_scc1 L_setready")
    a(f"s_sleep {P.get('PSLEEP', 4)}")
    a("s_mov_b32 s36, 0")
    a("s_atomic_or s36, s[50:51], 0x0 glc")
    a("s_waitcnt lgkmcnt(0)")
    a("s_branch L_poll1")
    a.label("L_setready")
    a(f"v_mov_b32 v{tmp}, 0")
    a(f"v_mov_b32 v{tmp+2}, 0")
    a(f"v_mov_b32 v{tmp+3}, 1")
    a("s_mov_b64 exec, 1")
    a(f"ds_add_u64 v{tmp}, v[{tmp+2}:{tmp+3}]")
    a(f"ds_add_u64 v{tmp}, v[{tmp+2}:{tmp+3}] offset:8")
    a("s_mov_b64 exec, -1")
    if P.get('CLAIMW', 0):
        a("s_setprio 0")
    a.label("L_loop0")
    if P.get("KPRIO"):
        a("s_cmp_lg_u32 s33, 0")
        a("s_cbranch_scc1 L_noprio")
        a(f"s_setprio {P['KPRIO']}")
        a.label("L_noprio")
    if P.get("PREWARM"):
        a("s_cmp_lg_u32 s34, 1")
        a("s_cbranch_scc1 L_nowarm")
        a(f"v_lshlrev_b32 v{tmp}, 21, v0")
        a(f"v_add_u32 v{tmp}, {NP*8192 + 4096}, v{tmp}")
        a("s_mov_b64 exec, 0xff")
        a(f"buffer_load_dword v{tmp+1}, v{tmp}, s[8:11], 0 offen nt")
        a("s_mov_b64 exec, -1")
        a("s_waitcnt vmcnt(0)")
        a.label("L_nowarm")
    if STAMP == 3:
        a("s_memrealtime s[72:73]")
        a("s_waitcnt vmcnt(0)")
        a("s_memrealtime s[70:71]")
        a("s_waitcnt lgkmcnt(0)")
        a(f"s_mul_i32 s36, s2, {WPB}")
        a("s_add_u32 s36, s36, s3")
        a("s_lshl_b32 s36, s36, 4")
        a("s_add_u32 s36, s36, 0x11000000")
        a("s_add_u32 s72, s28, s36")
        a("s_addc_u32 s73, s29, 0")
        a(f"v_mov_b32 v{tmp}, s40")
        a(f"v_mov_b32 v{tmp+1}, s68")
        a(f"v_mov_b32 v{tmp+2}, s70")
        a(f"v_mov_b32 v{tmp+3}, 0")
        a(f"v_mov_b32 v{tmp+4}, 0")
        a("s_mov_b64 exec, 1")
        a(f"global_store_dwordx4 v{tmp+4}, v[{tmp}:{tmp+3}], s[72:73]")
        a("s_mov_b64 exec, -1")
        a("s_waitcnt vmcnt(0)")
    if STAMP == 2:
        a("s_memrealtime s[72:73]")
        a("s_waitcnt vmcnt(0)")
        a("s_memrealtime s[70:71]")

    T4 = STAMP == 4
    stile = [74, 75, 92, 93, 94]
    def t4_after_wait(b):
        if T4:
            a("s_memrealtime s[68:69]")
            a(f"s_mov_b32 s70, s{stile[b]}")
    def t4_store():
        if T4:
            a("s_lshl_b32 s71, s70, 3")
            a("s_mov_b64 exec, 1")
            a(f"v_mov_b32 v{vT}, s68")
            a(f"v_mov_b32 v{vT1}, s69")
            a(f"buffer_store_dwordx2 v[{vT}:{vT1}], v{nvx}, s[76:79], s71 offen")
            a("s_mov_b64 exec, -1")
    def t4_set(nb):
        if T4:
            a(f"s_lshr_b32 s{stile[nb]}, s16, 13")
    if T4:
        nvx = nv
        nv += 1
        a(f"v_mov_b32 v{nvx}, 0")
        a("s_mov_b32 s70, 0x1000000")
        for b_ in range(NPRO):
            a(f"s_add_u32 s{stile[b_]}, s18, s34")
            if b_: a(f"s_add_u32 s{stile[b_]}, s{stile[b_]}, {b_*WT}")
        a("s_lshl_b32 s36, s32, 1")
        a("s_add_u32 s36, s36, s33")
        a("s_lshl_b32 s36, s36, 14")
        a("s_add_u32 s36, s36, 0x20000000")
        a("s_add_u32 s76, s28, s36")
        a("s_addc_u32 s77, s29, 0")
        a("s_and_b32 s77, s77, 0xffff")
        a("s_mov_b32 s78, 16384")
        a("s_mov_b32 s79, 0x20000")

    KSTEAL = P.get("KSTEAL", 1)
    if not KSTEAL:
        a("s_cmp_eq_u32 s33, 0")
        a(f"s_mov_b32 s95, {TW-WT}")
        a(f"s_cselect_b32 s95, s95, {NP-WT}")

    def grab_lds():
        a("s_mov_b64 exec, 1")
        a(f"ds_add_rtn_u64 v[{vT}:{vT1}], v{vCnt}, v[{vOne64}:{vOne64+1}]")
        a("s_mov_b64 exec, -1")

    def grab_pool():
        a("s_mov_b32 s23, 1")
        a("s_atomic_add s23, s[52:53], s58 glc")

    if PRE:
        a("s_branch L_p1m_0")
    for b in range(NB):
        nb = (b + NB - 1) % NB
        a.label(f"L_p1_{b}")
        grab_lds()
        a("s_waitcnt lgkmcnt(0)")
        a(f"v_readfirstlane_b32 s19, v{vT}")
        a(f"v_readfirstlane_b32 s22, v{vT1}")
        a("s_nop 2")
        if ROT:
            a("s_add_u32 s36, s19, s31")
            a(f"s_cmp_ge_u32 s36, {NP}")
            a(f"s_cselect_b32 s37, {NP}, 0")
            a("s_sub_u32 s36, s36, s37")
            a("s_add_u32 s36, s36, s18")
        else:
            a("s_add_u32 s36, s18, s19")
        a("s_lshl_b32 s16, s36, 13")
        a("s_lshl_b32 s17, s36, 6")
        if KSTEAL:
            a(f"s_cmp_ge_u32 s19, {NP-WT}")
        else:
            a("s_cmp_ge_u32 s19, s95")
        a(f"s_cbranch_scc1 L_sw_{b}")
        t4_store()
        t4_set(nb)
        loads(nb)
        if b == 0:
            a.label("L_p1m_0")
        a(f"s_waitcnt vmcnt({(L+1)*(NB-1)-1 if T4 else L*(NB-1)})")
        t4_after_wait(b)
        compute(b)
    a("s_branch L_p1_0")
    for b in range(NB):
        a.label(f"L_sw_{b}")
        if not KSTEAL:
            a("s_cmp_lg_u32 s33, 0")
            a(f"s_cbranch_scc1 L_swv_{b}")
            a("s_mov_b32 s80, 0")
            a("s_mov_b32 s82, 0")
            a("s_mov_b32 s23, -1")
            a(f"s_branch L_p2m_{b}")
            a.label(f"L_swv_{b}")
        a("s_cmp_lg_u32 s22, 0")
        a(f"s_cbranch_scc1 L_swok_{b}")
        a.label(f"L_swspin_{b}")
        a("s_sleep 4")
        a(f"ds_read_b64 v[{vT}:{vT1}], v{vCnt}")
        a("s_waitcnt lgkmcnt(0)")
        a(f"v_readfirstlane_b32 s22, v{vT1}")
        a("s_nop 2")
        a("s_cmp_eq_u32 s22, 0")
        a(f"s_cbranch_scc1 L_swspin_{b}")
        a.label(f"L_swok_{b}")
        a("s_lshl_b32 s58, s30, 2")
        a(f"s_add_u32 s59, s18, {NP}")
        a(f"s_mov_b32 s80, {P['RETRY']}")
        a("s_mov_b32 s82, 0")
        grab_pool()
        a(f"s_branch L_p2m_{b}")
    for b in range(NB):
        nb = (b + NB - 1) % NB
        a.label(f"L_p2_{b}")
        a("s_cmp_lg_u32 s82, 0")
        a(f"s_cbranch_scc1 L_p2c_{b}")
        a("s_waitcnt lgkmcnt(0)")
        a(f"s_cmp_ge_u32 s23, {NT}")
        a(f"s_cbranch_scc1 L_st_{b}")
        J = 0; O = 0
        if P.get("ILVT", 1):
            for k, (c, z) in enumerate(sched):
                off = (O - J) & 0xffffffff
                if k == 0:
                    a(f"s_mov_b32 s82, {z}")
                    a(f"s_mov_b32 s37, {off}")
                    a(f"s_mov_b32 s83, {c}")
                else:
                    a(f"s_cmp_ge_u32 s23, {J}")
                    a(f"s_cselect_b32 s82, {z}, s82")
                    a(f"s_cselect_b32 s37, {off}, s37")
                    if c != sched[k-1][0] and z > 1:
                        a(f"s_cselect_b32 s83, {c}, s83")
                J += c; O += c * z
            a("s_add_u32 s81, s23, s37")
            a("s_add_u32 s81, s81, s59")
        else:
            for k, (c, z) in enumerate(sched):
                lz = z.bit_length() - 1
                assert 1 << lz == z
                off = (O - (J << lz)) & 0xffffffff
                if k == 0:
                    a(f"s_mov_b32 s36, {lz}")
                    a(f"s_mov_b32 s37, {off}")
                else:
                    a(f"s_cmp_ge_u32 s23, {J}")
                    a(f"s_cselect_b32 s36, {lz}, s36")
                    a(f"s_cselect_b32 s37, {off}, s37")
                J += c; O += c * z
            a("s_lshl_b32 s81, s23, s36")
            a("s_add_u32 s81, s81, s37")
            a("s_add_u32 s81, s81, s59")
            a("s_lshl_b32 s82, 1, s36")
            a("s_mov_b32 s83, 1")
        EARLY = P.get("EARLY", 0)
        if EARLY == 1:
            grab_pool()
        if EARLY == 2:
            a("s_cmp_lg_u32 s82, 1")
            a(f"s_cbranch_scc1 L_p2c_{b}")
            grab_pool()
        a.label(f"L_p2c_{b}")
        a("s_lshl_b32 s16, s81, 13")
        a("s_lshl_b32 s17, s81, 6")
        a("s_add_u32 s81, s81, s83")
        a("s_sub_u32 s82, s82, 1")
        if EARLY == 0:
            a("s_cmp_lg_u32 s82, 0")
            a(f"s_cbranch_scc1 L_p2m_{b}")
            grab_pool()
        if EARLY == 2:
            a("s_cmp_lg_u32 s82, 1")
            a(f"s_cbranch_scc1 L_p2m_{b}")
            grab_pool()
        a.label(f"L_p2m_{b}")
        if T4:
            a("s_waitcnt lgkmcnt(0)") if False else None
        t4_store()
        t4_set(nb)
        loads(nb)
        a(f"s_waitcnt vmcnt({(L+1)*(NB-1)-1 if T4 else L*(NB-1)})")
        t4_after_wait(b)
        compute(b)
    a("s_branch L_p2_0")
    for b in range(NB):
        a.label(f"L_st_{b}")
        a("s_cmp_eq_u32 s80, 0")
        a(f"s_cbranch_scc1 L_dr_{b}")
        a("s_sub_u32 s80, s80, 1")
        a("s_load_dwordx8 s[84:91], s[52:53], 0x0 glc")
        a("s_waitcnt lgkmcnt(0)")
        a("s_mov_b32 s36, s84")
        a("s_mov_b32 s37, 0")
        for x in range(1, NX):
            a(f"s_cmp_lt_u32 s{84+x}, s36")
            a(f"s_cselect_b32 s36, s{84+x}, s36")
            a(f"s_cselect_b32 s37, {x}, s37")
        a(f"s_cmp_ge_u32 s36, {NT}")
        a(f"s_cbranch_scc1 L_dr_{b}")
        a("s_lshl_b32 s58, s37, 2")
        a(f"s_mul_i32 s59, s37, {TW}")
        a(f"s_add_u32 s59, s59, {NP}")
        grab_pool()
        a(f"s_branch L_p2_{b}")
    for b in range(NB):
        a.label(f"L_dr_{b}")
        a(f"buffer_load_dwordx4 v[{AUX}:{AUX+3}], v{vAuxOff}, s[64:67], 0 offen sc1")
        for k in range(NB - 1):
            a(f"s_waitcnt vmcnt({L*(NB-2-k)+1})")
            compute((b + k) % NB)
        if b + 1 < NB:
            a("s_branch L_loopdone")
    a.label("L_loopdone")
    if STAMP:
        a("s_memrealtime s[42:43]")
        a("s_waitcnt lgkmcnt(0)")
        a("v_mov_b32 v4, s42")
        a("v_mov_b32 v5, 96")
        a("s_mov_b64 exec, 1")
        a("ds_max_u32 v5, v4")
        a("s_mov_b64 exec, -1")
    a("v_and_b32 v4, 15, v0")
    a("v_lshrrev_b32 v5, 4, v0")
    a("s_cmp_lg_u32 s33, 0")
    a("s_cbranch_scc1 L_vend")
    if P.get("KMIMIC", 0):
        L_KP = 8192
        WS_KP = 1 << 20
        a("s_lshl_b32 s36, s34, 13")
        a("v_lshlrev_b32 v6, 4, v0")
        a("v_add_u32 v7, s36, v6")
        a("s_nop 7")
        for dd in range(8):
            a(f"ds_write_b128 v7, v[{acc+4*dd}:{acc+4*dd+3}] offset:{L_KP + dd*1024}")
        a("s_waitcnt lgkmcnt(0)")
        a("s_mov_b64 exec, 1")
        a(f"v_mov_b32 v8, {L_KC}")
        a("v_mov_b32 v9, 1")
        a("ds_add_rtn_u32 v9, v8, v9")
        a("s_mov_b64 exec, -1")
        a("s_waitcnt lgkmcnt(0)")
        a("v_readfirstlane_b32 s36, v9")
        a("s_nop 3")
        a(f"s_cmp_lg_u32 s36, {WT-1}")
        a("s_cbranch_scc1 L_fin")
        a("s_lshl_b32 s36, s32, 16")
        a(f"s_add_u32 s36, s36, {WS_KP}")
        a("s_add_u32 s8, s28, s36")
        a("s_addc_u32 s9, s29, 0")
        a("s_and_b32 s9, s9, 0xffff")
        a("s_mov_b32 s10, 65536")
        a("s_mov_b32 s11, 0x20000")
        a("s_lshl_b32 s37, s30, 13")
        for dd in range(8):
            for w in range(WT):
                a(f"ds_read_b128 v[{20+4*w}:{23+4*w}], v6 offset:{L_KP + w*8192 + dd*1024}")
            for w in range(1, WT):
                a(f"s_waitcnt lgkmcnt({WT-1-w})")
                for i in range(4):
                    if w == 1:
                        a(f"v_add_f32 v{acc+4*dd+i}, v{20+i}, v{24+i}")
                    else:
                        a(f"v_add_f32 v{acc+4*dd+i}, v{acc+4*dd+i}, v{20+4*w+i}")
            a(f"buffer_store_dwordx4 v[{acc+4*dd}:{acc+4*dd+3}], v6, s[8:11], s37 offen sc1")
            if dd < 7:
                a("s_add_u32 s37, s37, 1024")
        a("s_waitcnt vmcnt(0)")
        a("s_mov_b32 s36, 1")
        a(f"s_atomic_add s36, s[54:55], {C_KARR} glc")
        a("s_waitcnt lgkmcnt(0)")
        a(f"s_cmp_lg_u32 s36, {NX-1}")
        a("s_cbranch_scc1 L_fin")
        Q = 8
        for j in range(4):
            a(f"v_lshlrev_b32 v{Q+2*j}, 16, v{AUX+j}")
            a(f"v_and_b32 v{Q+2*j+1}, 0xffff0000, v{AUX+j}")
        T = 16
        LB = 20
        for half in range(4):
            for d2 in range(2):
                dd = half * 2 + d2
                for x in range(NX):
                    a(f"s_mov_b32 s37, {x*8192 + dd*1024}")
                    rr = LB + (d2 * NX + x) * 4
                    a(f"buffer_load_dwordx4 v[{rr}:{rr+3}], v6, s[8:11], s37 offen sc1")
            for d2 in range(2):
                dd = half * 2 + d2
                rr = LB + d2 * NX * 4
                a(f"s_waitcnt vmcnt({NX if d2 == 0 else 0})")
                for x in range(1, NX):
                    for i in range(4):
                        a(f"v_add_f32 v{rr+i}, v{rr+i}, v{rr+4*x+i}")
                a(f"v_cvt_pk_bf16_f32 v{rr+4}, v{rr}, v{rr+1}")
                a(f"v_cvt_pk_bf16_f32 v{rr+5}, v{rr+2}, v{rr+3}")
                a(f"v_lshlrev_b32 v{rr}, 16, v{rr+4}")
                a(f"v_and_b32 v{rr+1}, 0xffff0000, v{rr+4}")
                a(f"v_lshlrev_b32 v{rr+2}, 16, v{rr+5}")
                a(f"v_and_b32 v{rr+3}, 0xffff0000, v{rr+5}")
                for i in range(4):
                    if dd == 0:
                        a(f"v_mul_f32 v{T+i}, v{Q}, v{rr+i}")
                    else:
                        a(f"v_fmac_f32 v{T+i}, v{Q+dd}, v{rr+i}")
        for sh in (8, 4, 2, 1):
            a("s_nop 1")
            for i in range(4):
                a(f"v_add_f32_dpp v{T+i}, v{T+i}, v{T+i} row_ror:{sh} row_mask:0xf bank_mask:0xf")
        a("v_lshlrev_b32 v6, 4, v5")
        a("v_cmp_eq_u32 vcc, 0, v4")
        a("s_and_saveexec_b64 s[48:49], vcc")
        a(f"ds_write_b128 v6, v[{T}:{T+3}] offset:{L_SK}")
        a("s_mov_b64 exec, s[48:49]")
        a("v_lshlrev_b32 v6, 2, v4")
        a("s_waitcnt lgkmcnt(0)")
        a(f"ds_read_b32 v8, v6 offset:{L_SK}")
        a("s_waitcnt lgkmcnt(0)")
    else:
        a("s_waitcnt vmcnt(0)")
        Q = 8
        for j in range(4):
            a(f"v_lshlrev_b32 v{Q+2*j}, 16, v{AUX+j}")
            a(f"v_and_b32 v{Q+2*j+1}, 0xffff0000, v{AUX+j}")
        T = 16
        for i in range(4):
            a(f"v_mul_f32 v{T+i}, v{Q}, v{acc+i}")
        for dd in range(1, 8):
            for i in range(4):
                a(f"v_fmac_f32 v{T+i}, v{Q+dd}, v{acc+4*dd+i}")
        for sh in (8, 4, 2, 1):
            a("s_nop 1")
            for i in range(4):
                a(f"v_add_f32_dpp v{T+i}, v{T+i}, v{T+i} row_ror:{sh} row_mask:0xf bank_mask:0xf")
        a("v_lshlrev_b32 v6, 4, v5")
        a("v_cmp_eq_u32 vcc, 0, v4")
        a("s_and_saveexec_b64 s[48:49], vcc")
        for i in range(4):
            a(f"ds_add_f32 v6, v{T+i} offset:{L_SK + 4*i}")
        a("s_mov_b64 exec, 1")
        a(f"v_mov_b32 v8, {L_KC}")
        a("v_mov_b32 v9, 1")
        a("ds_add_rtn_u32 v9, v8, v9")
        a("s_mov_b64 exec, -1")
        a("s_waitcnt lgkmcnt(0)")
        a("v_readfirstlane_b32 s36, v9")
        a("s_nop 3")
        a(f"s_cmp_lg_u32 s36, {WT-1}")
        a("s_cbranch_scc1 L_fin")
        a("v_lshlrev_b32 v6, 2, v4")
        a(f"ds_read_b32 v7, v6 offset:{L_SK}")
        a("s_lshl_b32 s36, s30, 6")
        a("v_add_u32 v6, s36, v6")
        a("s_waitcnt lgkmcnt(0)")
        a("s_mov_b64 exec, 0xffff")
        a(f"global_store_dword v6, v7, s[54:55] offset:{C_KS} sc1")
        a("s_mov_b64 exec, -1")
        a("s_waitcnt vmcnt(0)")
        a("s_mov_b32 s36, 1")
        a(f"s_atomic_add s36, s[54:55], {C_KARR} glc")
        a("s_waitcnt lgkmcnt(0)")
        a(f"s_cmp_lg_u32 s36, {NX-1}")
        a("s_cbranch_scc1 L_fin")
        a("v_lshlrev_b32 v6, 2, v0")
        a(f"global_load_dword v8, v6, s[54:55] offset:{C_KS} sc1")
        a(f"global_load_dword v9, v6, s[54:55] offset:{C_KS+256} sc1")
        a("v_xor_b32 v6, 16, v0")
        a("v_lshlrev_b32 v6, 2, v6")
        a("v_xor_b32 v7, 32, v0")
        a("v_lshlrev_b32 v7, 2, v7")
        a("s_waitcnt vmcnt(0)")
        a("v_add_f32 v8, v8, v9")
        a("ds_bpermute_b32 v9, v6, v8")
        a("s_waitcnt lgkmcnt(0)")
        a("v_add_f32 v8, v8, v9")
        a("ds_bpermute_b32 v9, v7, v8")
        a("s_waitcnt lgkmcnt(0)")
        a("v_add_f32 v8, v8, v9")
    a("v_cvt_pk_bf16_f32 v8, v8, v8")
    a("v_lshlrev_b32 v8, 16, v8")
    a("v_mul_f32 v8, 0x3db504f3, v8")
    a("v_cvt_pk_bf16_f32 v8, v8, v8")
    a("v_lshlrev_b32 v8, 16, v8")
    a("v_mov_b32 v9, v8")
    for sh in (8, 4, 2, 1):
        a("s_nop 1")
        a(f"v_max_f32_dpp v9, v9, v9 row_ror:{sh} row_mask:0xf bank_mask:0xf")
    a("v_sub_f32 v8, v8, v9")
    a("v_mul_f32 v8, 0x3fb8aa3b, v8")
    a("v_exp_f32 v8, v8")
    a("s_nop 0")
    a("v_mov_b32 v9, v8")
    for sh in (8, 4, 2, 1):
        a("s_nop 1")
        a(f"v_add_f32_dpp v9, v9, v9 row_ror:{sh} row_mask:0xf bank_mask:0xf")
    a("v_rcp_f32 v9, v9")
    a("s_nop 0")
    a("v_mul_f32 v8, v8, v9")
    a("v_cvt_pk_bf16_f32 v8, v8, v8")
    a("v_lshlrev_b32 v8, 16, v8")
    a("v_lshlrev_b32 v6, 2, v4")
    a("s_mov_b64 exec, 0xffff")
    a(f"global_store_dword v6, v8, s[54:55] offset:{C_P} sc1")
    a("s_branch L_fin")
    a.label("L_vend")
    a(f"s_mov_b32 s36, {P['SPIN']}")
    a.label("L_pchk")
    a("s_waitcnt vmcnt(0)")
    a(f"v_cmp_eq_u32 vcc, -1, v{AUX}")
    a(f"v_cmp_eq_u32 s[48:49], -1, v{AUX+1}")
    a("s_or_b64 vcc, vcc, s[48:49]")
    a(f"v_cmp_eq_u32 s[48:49], -1, v{AUX+2}")
    a("s_or_b64 vcc, vcc, s[48:49]")
    a(f"v_cmp_eq_u32 s[48:49], -1, v{AUX+3}")
    a("s_or_b64 vcc, vcc, s[48:49]")
    a("s_cbranch_vccz L_pok")
    a("s_sub_u32 s36, s36, 1")
    a("s_cbranch_scc1 L_pok")
    a(f"s_sleep {120 if P.get('SWAPT') else 8}")
    a(f"buffer_load_dwordx4 v[{AUX}:{AUX+3}], v{vAuxOff}, s[64:67], 0 offen sc1")
    a("s_branch L_pchk")
    a.label("L_pok")
    if STAMP:
        a("s_memrealtime s[42:43]")
        a("s_waitcnt lgkmcnt(0)")
        a("v_mov_b32 v6, s42")
        a("v_mov_b32 v7, 100")
        a("s_mov_b64 exec, 1")
        a("ds_max_u32 v7, v6")
        a("s_mov_b64 exec, -1")
    O = 8
    for dd in range(8):
        a(f"v_mul_f32 v{O+dd}, v{AUX}, v{acc+4*dd}")
    for i in range(1, 4):
        for dd in range(8):
            a(f"v_fmac_f32 v{O+dd}, v{AUX+i}, v{acc+4*dd+i}")
    a("s_nop 1")
    a(f"v_permlane32_swap_b32 v{O+0}, v{O+4}")
    a(f"v_permlane32_swap_b32 v{O+2}, v{O+6}")
    a(f"v_permlane32_swap_b32 v{O+1}, v{O+5}")
    a(f"v_permlane32_swap_b32 v{O+3}, v{O+7}")
    a("s_nop 1")
    a(f"v_add_f32 v{O+0}, v{O+0}, v{O+4}")
    a(f"v_add_f32 v{O+2}, v{O+2}, v{O+6}")
    a(f"v_add_f32 v{O+1}, v{O+1}, v{O+5}")
    a(f"v_add_f32 v{O+3}, v{O+3}, v{O+7}")
    a("s_nop 1")
    a(f"v_permlane16_swap_b32 v{O+0}, v{O+2}")
    a(f"v_permlane16_swap_b32 v{O+1}, v{O+3}")
    a("s_nop 1")
    a(f"v_add_f32 v{O+0}, v{O+0}, v{O+2}")
    a(f"v_add_f32 v{O+1}, v{O+1}, v{O+3}")
    a("v_lshlrev_b32 v6, 3, v0")
    a("s_lshl_b32 s36, s34, 9")
    a("v_add_u32 v7, s36, v6")
    a(f"ds_write_b64 v7, v[{O}:{O+1}] offset:{L_OL}")
    a("s_waitcnt lgkmcnt(0)")
    a("s_barrier")
    if STAMP:
        a("s_memrealtime s[44:45]")
    a(f"s_cmp_lg_u32 s3, {FW}")
    a("s_cbranch_scc1 L_fin")
    for w in range(WT):
        a(f"ds_read_b64 v[{10+2*w}:{11+2*w}], v6 offset:{L_OL + 512*w}")
    for w in range(WT):
        a(f"s_waitcnt lgkmcnt({WT-1-w})")
        if w == 0:
            a("v_mov_b32 v8, v10")
            a("v_mov_b32 v9, v11")
        else:
            a(f"v_add_f32 v8, v8, v{10+2*w}")
            a(f"v_add_f32 v9, v9, v{11+2*w}")
    a("s_cmp_eq_u32 s30, 0")
    a("s_cbranch_scc1 L_final")
    a("v_mov_b32 v10, 0x7fc00000")
    a("v_cmp_eq_u32 vcc, -1, v8")
    a("v_cmp_eq_u32 s[48:49], -1, v9")
    a("s_lshl_b32 s36, s30, 9")
    a("v_add_u32 v6, s36, v6")
    a("v_cndmask_b32 v8, v8, v10, vcc")
    a("v_cndmask_b32 v9, v9, v10, s[48:49]")
    a(f"global_store_dwordx2 v6, v[8:9], s[54:55] offset:{C_O} sc1")
    a("s_branch L_fin")
    a.label("L_final")
    a(f"v_add_u32 v6, {C_O}, v6")
    a(f"s_mov_b32 s36, {P['SPIN']}")
    a.label("L_opoll")
    for x in range(1, NX):
        a(f"global_load_dwordx2 v[{10+2*x}:{11+2*x}], v6, s[54:55] offset:{x*512} sc1")
    a("s_waitcnt vmcnt(0)")
    a(f"v_cmp_eq_u32 vcc, -1, v12")
    for r in range(13, 10 + 2 * NX):
        a(f"v_cmp_eq_u32 s[48:49], -1, v{r}")
        a("s_or_b64 vcc, vcc, s[48:49]")
    a("s_cbranch_vccz L_ook")
    a("s_sub_u32 s36, s36, 1")
    a("s_cbranch_scc1 L_ook")
    a("s_sleep 2")
    a("s_branch L_opoll")
    a.label("L_ook")
    for x in range(1, NX):
        a(f"v_add_f32 v8, v8, v{10+2*x}")
        a(f"v_add_f32 v9, v9, v{11+2*x}")
    a("v_cvt_pk_bf16_f32 v8, v8, v9")
    a("s_lshl_b32 s36, s32, 8")
    a("s_add_u32 s12, s60, s36")
    a("s_addc_u32 s13, s61, 0")
    a("s_and_b32 s13, s13, 0xffff")
    a("s_mov_b32 s14, 256")
    a("s_mov_b32 s15, 0x20000")
    a("v_lshlrev_b32 v6, 4, v4")
    a("v_lshl_add_u32 v6, v5, 2, v6")
    a("buffer_store_dword v8, v6, s[12:15], 0 offen")
    a.label("L_fin")
    if STAMP:
        a(f"s_cmp_lg_u32 s3, {FW}")
        a("s_cbranch_scc1 L_done")
        a("s_waitcnt vmcnt(0)")
        a("s_memrealtime s[46:47]")
        a("s_getreg_b32 s37, hwreg(HW_REG_XCC_ID)")
        a("s_waitcnt lgkmcnt(0)")
        a("s_lshl_b32 s36, s2, 5")
        a("s_add_u32 s36, s36, 0x10000000")
        a("s_add_u32 s8, s28, s36")
        a("s_addc_u32 s9, s29, 0")
        a("s_and_b32 s9, s9, 0xffff")
        a("s_mov_b32 s10, 32")
        a("s_mov_b32 s11, 0x20000")
        a("v_mov_b32 v9, 96")
        a("ds_read_b64 v[10:11], v9")
        a("v_mov_b32 v4, s40")
        a("v_mov_b32 v6, s44")
        a("v_mov_b32 v7, s46")
        a("v_mov_b32 v8, s37")
        a("s_waitcnt lgkmcnt(0)")
        a("v_mov_b32 v5, v10")
        a("v_mov_b32 v9, v11")
        if STAMP == 2:
            a("v_mov_b32 v5, s68")
            a("v_mov_b32 v6, s72")
            a("v_mov_b32 v7, s70")
            a("v_mov_b32 v9, 0")
        a("buffer_store_dword v9, v12, s[8:11], 0 offen offset:20") if False else None
        a("v_mov_b32 v12, 0")
        a("s_mov_b64 exec, 1")
        a("buffer_store_dwordx4 v[4:7], v12, s[8:11], 0 offen")
        a("buffer_store_dwordx2 v[8:9], v12, s[8:11], 0 offen offset:16")
    a.label("L_done")
    a("s_endpgm")
    lds = P["LDS"]
    hdr = HDR + f"; @launch grid=({NWG},1,1) block=({WPB*64},1,1) lds={lds}\n" + DOC
    return hdr + '.amdgcn_target "amdgcn-amd-amdhsa--gfx950"\n.text\n' + a.text() + desc(KN, nv, 96)


DEF = dict(WPB=16, NX=8, NB=2, SCHED="8x8,8x4,8x2,16x1", KFLAGS="nt", SPIN=100000, LDS=98304, RETRY=24)

if __name__ == "__main__":
    P = dict(DEF)
    out = sys.argv[1]
    for kv in sys.argv[2:]:
        k, v = kv.split("=")
        try:
            v = int(v)
        except ValueError:
            v = v.replace("+", " ")
        P[k] = v
    open(out, "w").write(gen(P))
    print("wrote", out, P)
```
